```python
import torch

def _softmax(x, axis=-1):
    return torch.softmax(x, dim=axis)
def _gelu(x):
    return torch.nn.functional.gelu(x, approximate="tanh")
def _silu(x):
    return torch.nn.functional.silu(x)
def _sigmoid(x):
    return torch.sigmoid(x)
def _layernorm(x, axis=-1, eps=1e-5):
    m = x.mean(dim=axis, keepdim=True)
    v = x.var(dim=axis, keepdim=True, unbiased=False)
    return (x - m) / torch.sqrt(v + eps)
def _scatter_add(tgt, idx, src, axis=0):
    return tgt.clone().index_add_(axis, idx, src)
def _segment_sum(src, seg, n):
    out = torch.zeros((n,) + src.shape[1:], dtype=src.dtype)
    return out.index_add_(0, seg, src)
def _pad(x, pw):
    flat = tuple(v for pair in reversed(pw) for v in pair)
    return torch.nn.functional.pad(x, flat)

kernel_name = 'standalone__edge_featured_mpnn_gatedgcn__graph'

def setup_inputs():

    _w = (lambda a: (lambda t: t.to(torch.bfloat16) if t.is_floating_point() else t)(torch.as_tensor(a)))
    N, deg, D, De = 12500, 64, 64, max(4, 1)
    E = N * deg
    return {
        "x": _w((lambda *s: torch.randn(*s, dtype=torch.bfloat16) * 0.8)(N, D)),
        "e_attr": _w((lambda *s: torch.randn(*s, dtype=torch.bfloat16) * 0.8)(E, De)),
        "src": _w((lambda lo, hi, *s: torch.randint(lo, hi, s))(0, N, E).to(torch.int64)),
        "dst": _w((lambda lo, hi, *s: torch.randint(lo, hi, s))(0, N, E).to(torch.int64)),
        "w_a": _w((lambda *s: torch.randn(*s, dtype=torch.bfloat16) * 0.8)(D, D)),
        "w_b": _w((lambda *s: torch.randn(*s, dtype=torch.bfloat16) * 0.8)(D, D)),
        "w_c": _w((lambda *s: torch.randn(*s, dtype=torch.bfloat16) * 0.8)(De, D)),
        "w_u": _w((lambda *s: torch.randn(*s, dtype=torch.bfloat16) * 0.05)(D, D)),
        "w_v": _w((lambda *s: torch.randn(*s, dtype=torch.bfloat16) * 0.05)(D, D)),
    }

def reference(x, e_attr, src, dst, w_a, w_b, w_c, w_u, w_v):
    N, D = x.shape
    hv = x @ w_v
    g = x[dst] @ w_a + x[src] @ w_b + e_attr @ w_c
    eta = _sigmoid(g)
    denom = _segment_sum(eta, dst, N) + 1e-6
    eta_n = eta / denom[dst]
    agg = _segment_sum(eta_n * hv[src], dst, N)
    z = x @ w_u + agg
    relu_z = torch.where(z > 0, z, 0 * z)
    return x + relu_z
```

```python
import sys, struct

NAME = "standalone__edge_featured_mpnn_gatedgcn__graph"
N, E, D = 12500, 800000, 64
NCH, CH = 250, 3200
NB, BN = 256, 49
CHB = CH * 12
WS_OFF = NCH * CHB
WS_WF = WS_OFF + NCH * 1024
WF_BYTES = 4 * 8192 + 1024
NLOG2E = struct.unpack("<I", struct.pack("<f", -1.4426950408889634))[0]

OPT = dict(stamp=False, k1store="", warm=False)
for a in sys.argv[1:]:
    if "=" in a:
        k, v = a.split("=", 1)
        OPT[k] = eval(v)

out = []
def A(s=""):
    out.append(s)
def L(lbl):
    out.append(lbl + ":")
def I(s):
    for ln in s.strip().split("\n"):
        out.append("    " + ln.strip())

def vr(b, n=1):
    return f"v{b}" if n == 1 else f"v[{b}:{b+n-1}]"
def ar(b, n=1):
    return f"a{b}" if n == 1 else f"a[{b}:{b+n-1}]"
def sr(b, n=1):
    return f"s{b}" if n == 1 else f"s[{b}:{b+n-1}]"

def srd(d, lo, hi, nrec, stride=0):
    if lo != d:
        I(f"s_mov_b32 s{d}, s{lo}")
    if stride:
        I(f"s_and_b32 s{d+1}, s{hi}, 0xffff")
        I(f"s_or_b32 s{d+1}, s{d+1}, {stride << 16:#x}")
    else:
        I(f"s_and_b32 s{d+1}, s{hi}, 0xffff")
    I(f"s_mov_b32 s{d+2}, {nrec}")
    I(f"s_mov_b32 s{d+3}, 0x20000")

def wave_scan(v):
    for sh in (1, 2, 4, 8):
        I("s_nop 1")
        I(f"v_add_u32_dpp v{v}, v{v}, v{v} row_shr:{sh} row_mask:0xf bank_mask:0xf bound_ctrl:0")
    I("s_nop 1")
    I(f"v_add_u32_dpp v{v}, v{v}, v{v} row_bcast:15 row_mask:0xa bank_mask:0xf")
    I("s_nop 1")
    I(f"v_add_u32_dpp v{v}, v{v}, v{v} row_bcast:31 row_mask:0xc bank_mask:0xf")

K1_LDS_HIST = CHB
K1_LDS_OFFS = CHB + 1024
K1_LDS = CHB + 2048
K1_BLOCK = 832
K1_GRID = NCH + 4

CAP = 4480
CAPLIM = CAP - 128
L_S4 = 0
L_E8 = L_S4 + CAP * 4
L_T = L_E8 + CAP * 8
T_ATAB = 0
T_NUM = 16384
T_DEN = T_NUM + 66 * 256
T_END = T_DEN + 66 * 256
L_UT = L_T + T_END
L_MISC = L_UT + 16384
M_CNT1, M_CNT2, M_LMIN, M_LCNT, M_FLAG = 0, 256, 512, 768, 1024
L_XB = L_MISC + 1280
K2_LDS = L_XB + 8 * 4096
assert K2_LDS <= 163840 and L_XB % 16 == 0
PADW = (N << 16) | 0x7E00 | (BN * 4)

hdr = open("cdna_kernels/" + NAME + ".s.ref").read().split("; Override launch")[0]
A(hdr.rstrip())
A(f"; @launch kernel=bin_kernel grid=({K1_GRID},1,1) block=({K1_BLOCK},1,1) lds={K1_LDS}")
A(f"; @launch kernel={NAME}_kernel grid=({NB},1,1) block=(512,1,1) lds={K2_LDS}")
A('.amdgcn_target "amdgcn-amd-amdhsa--gfx950"')
A(".text")

A(".globl bin_kernel")
A(".p2align 8")
A(".type bin_kernel,@function")
L("bin_kernel")
I(f"s_cmp_ge_u32 s2, {K1_GRID}")
I("s_cbranch_scc1 K1_end")
I(f"s_cmp_ge_u32 s2, {NCH}")
I("s_cbranch_scc1 K1_weights")
I("s_load_dwordx2 s[4:5], s[0:1], 8")
I("s_load_dwordx4 s[8:11], s[0:1], 16")
I("s_load_dwordx2 s[16:17], s[0:1], 88")
I("v_lshlrev_b32 v1, 2, v0")
I("v_mov_b32 v2, 0")
I("v_mov_b32 v40, 1")
I("s_mul_i32 s3, s2, 12800")
I("v_lshl_add_u32 v3, v0, 4, s3")
I("v_lshlrev_b32 v4, 1, v3")
I("v_cmp_gt_u32 vcc, 256, v0")
I("s_and_saveexec_b64 s[30:31], vcc")
I(f"ds_write_b32 v1, v2 offset:{K1_LDS_HIST}")
I("s_mov_b64 exec, s[30:31]")
I("s_movk_i32 s34, 800")
I("v_cmp_gt_u32 s[32:33], s34, v0")
I("s_waitcnt lgkmcnt(0)")
I("s_mov_b32 s12, s10")
I("s_mov_b32 s13, s11")
srd(12, 12, 13, E * 4)
srd(8, 8, 9, E * 4)
srd(4, 4, 5, E * 8)
I("s_mov_b64 exec, s[32:33]")
I("buffer_load_dwordx4 v[8:11], v3, s[12:15], 0 offen")
I("buffer_load_dwordx4 v[12:15], v3, s[8:11], 0 offen")
I("buffer_load_dwordx4 v[16:19], v4, s[4:7], 0 offen")
I("buffer_load_dwordx4 v[20:23], v4, s[4:7], 0 offen offset:16")
I("s_add_u32 s20, s16, %d" % WS_OFF)
I("s_addc_u32 s21, s17, 0")
srd(16, 16, 17, WS_OFF)
srd(20, 20, 21, NCH * 1024)
I("s_movk_i32 s35, 21400")
I("s_movk_i32 s36, -196")
I("s_barrier")
I("s_waitcnt vmcnt(3)")
for k in range(4):
    I(f"v_mul_u32_u24 v{24+k}, s35, v{8+k}")
    I(f"v_lshrrev_b32 v{24+k}, 20, v{24+k}")
    I(f"v_lshlrev_b32 v{8+k}, 2, v{8+k}")
    I(f"v_mad_i32_i24 v{8+k}, v{24+k}, s36, v{8+k}")
    I(f"v_lshlrev_b32 v{24+k}, 2, v{24+k}")
    I(f"ds_add_rtn_u32 v{28+k}, v{24+k}, v40 offset:{K1_LDS_HIST}")
I("s_mov_b64 exec, -1")
I("v_and_b32 v5, 63, v0")
I("v_lshlrev_b32 v5, 4, v5")
I("s_waitcnt lgkmcnt(0)")
I("s_barrier")
I(f"ds_read_b128 v[32:35], v5 offset:{K1_LDS_HIST}")
I("s_waitcnt lgkmcnt(0)")
I("v_add_u32 v37, v32, v33")
I("v_add_u32 v38, v37, v34")
I("v_add_u32 v39, v38, v35")
I("v_mov_b32 v41, v39")
wave_scan(41)
I("v_sub_u32 v44, v41, v39")
I("v_add_u32 v45, v44, v32")
I("v_add_u32 v46, v44, v37")
I("v_add_u32 v47, v44, v38")
I(f"ds_write_b128 v5, v[44:47] offset:{K1_LDS_OFFS}")
I("s_mov_b64 exec, s[32:33]")
for k in range(4):
    I(f"ds_read_b32 v{24+k}, v{24+k} offset:{K1_LDS_OFFS}")
I("v_cmp_gt_u32 vcc, 64, v0")
I("s_and_saveexec_b64 s[30:31], vcc")
I("s_cbranch_execz K1_nooff")
for k in range(4):
    I(f"v_lshl_or_b32 v{44+k}, v{32+k}, 16, v{44+k}")
I("s_lshl_b32 s3, s2, 10")
I(f"buffer_store_dwordx4 v[44:47], v5, s[20:23], s3 offen {OPT['k1store']}")
L("K1_nooff")
I("s_mov_b64 exec, s[32:33]")
I("s_waitcnt lgkmcnt(0)")
for k in range(4):
    I(f"v_add_u32 v{24+k}, v{24+k}, v{28+k}")
    I(f"v_mul_u32_u24 v{24+k}, 12, v{24+k}")
I("s_waitcnt vmcnt(2)")
for k in range(4):
    I(f"v_lshl_or_b32 v{8+k}, v{12+k}, 16, v{8+k}")
    I(f"ds_write_b32 v{24+k}, v{8+k} offset:8")
I("s_waitcnt vmcnt(0)")
for k in range(4):
    I(f"ds_write2_b32 v{24+k}, v{16+2*k}, v{17+2*k} offset0:0 offset1:1")
I("v_lshlrev_b32 v6, 4, v0")
I(f"s_mul_i32 s3, s2, {CHB}")
I("s_add_u32 s37, s3, 12800")
I("s_add_u32 s38, s3, 25600")
I("s_waitcnt lgkmcnt(0)")
I("s_barrier")
I("ds_read_b128 v[8:11], v6")
I("ds_read_b128 v[12:15], v6 offset:12800")
I("ds_read_b128 v[16:19], v6 offset:25600")
I("s_waitcnt lgkmcnt(2)")
I(f"buffer_store_dwordx4 v[8:11], v6, s[16:19], s3 offen {OPT['k1store']}")
I("s_waitcnt lgkmcnt(1)")
I(f"buffer_store_dwordx4 v[12:15], v6, s[16:19], s37 offen {OPT['k1store']}")
I("s_waitcnt lgkmcnt(0)")
I(f"buffer_store_dwordx4 v[16:19], v6, s[16:19], s38 offen {OPT['k1store']}")
I("s_endpgm")

L("K1_weights")
I(f"s_sub_u32 s3, s2, {NCH}")
I("s_mov_b32 s24, 40")
I("s_cmp_eq_u32 s3, 1")
I("s_cselect_b32 s24, 64, s24")
I("s_cmp_eq_u32 s3, 2")
I("s_cselect_b32 s24, 32, s24")
I("s_cmp_eq_u32 s3, 3")
I("s_cselect_b32 s24, 56, s24")
I("s_load_dwordx2 s[4:5], s[0:1], s24")
I("s_load_dwordx2 s[8:9], s[0:1], 48")
I("s_load_dwordx2 s[16:17], s[0:1], 88")
I("s_cmp_eq_u32 s3, 0")
I(f"s_cselect_b32 s25, {NLOG2E:#x}, 1.0")
I("v_and_b32 v1, 31, v0")
I("v_bfe_u32 v2, v0, 5, 1")
I("v_bfe_u32 v3, v0, 6, 2")
I("v_bfe_u32 v4, v0, 8, 1")
I("v_lshl_add_u32 v5, v3, 1, v2")
I("v_lshlrev_b32 v5, 10, v5")
I("v_lshl_add_u32 v6, v4, 5, v1")
I("v_lshl_add_u32 v5, v6, 1, v5")
I("s_waitcnt lgkmcnt(0)")
srd(4, 4, 5, 8192)
srd(8, 8, 9, 512)
I("s_add_u32 s16, s16, %d" % WS_WF)
I("s_addc_u32 s17, s17, 0")
srd(16, 16, 17, WF_BYTES)
I("s_movk_i32 s34, 512")
I("v_cmp_gt_u32 vcc, s34, v0")
I("s_and_saveexec_b64 s[30:31], vcc")
I("s_cbranch_execz K1_wc")
for i in range(8):
    I(f"buffer_load_ushort v{8+i}, v5, s[4:7], 0 offen offset:{128*i}")
I("s_lshl_b32 s26, s3, 13")
I("v_lshlrev_b32 v7, 4, v0")
I("s_waitcnt vmcnt(0)")
for i in range(8):
    I(f"v_lshlrev_b32 v{8+i}, 16, v{8+i}")
    I(f"v_mul_f32 v{8+i}, s25, v{8+i}")
for i in range(4):
    I(f"v_cvt_pk_bf16_f32 v{16+i}, v{8+2*i}, v{9+2*i}")
I("buffer_store_dwordx4 v[16:19], v7, s[16:19], s26 offen")
I("s_endpgm")
L("K1_wc")
I("s_mov_b64 exec, s[30:31]")
I("s_cmp_lg_u32 s3, 0")
I("s_cbranch_scc1 K1_end")
I("s_movk_i32 s34, 640")
I("v_cmp_gt_u32 vcc, s34, v0")
I("s_and_saveexec_b64 s[30:31], vcc")
I("s_cbranch_execz K1_end")
I("v_bfe_u32 v4, v0, 6, 1")
I("v_lshl_add_u32 v6, v4, 5, v1")
I("v_lshlrev_b32 v6, 1, v6")
for i in range(4):
    I(f"buffer_load_ushort v{8+i}, v6, s[8:11], 0 offen offset:{128*i}")
I("v_and_b32 v7, 127, v0")
I("v_lshlrev_b32 v7, 3, v7")
I("s_mov_b32 s26, 32768")
I("s_waitcnt vmcnt(0)")
for i in range(4):
    I(f"v_lshlrev_b32 v{8+i}, 16, v{8+i}")
    I(f"v_mul_f32 v{8+i}, s25, v{8+i}")
I("v_cvt_pk_bf16_f32 v16, v8, v9")
I("v_cvt_pk_bf16_f32 v17, v10, v11")
I("v_mov_b32 v18, 0x3f80")
I("v_cmp_eq_u32 vcc, 1, v2")
I("s_nop 1")
I("v_cndmask_b32 v16, v16, v18, vcc")
I("v_mov_b32 v19, 0")
I("v_cndmask_b32 v17, v17, v19, vcc")
I("buffer_store_dwordx2 v[16:17], v7, s[16:19], s26 offen")
L("K1_end")
I("s_endpgm")

sX, sXN, sOFF, sREC, sWF, sOUT = 4, 8, 12, 16, 20, 24
sW, sCONS, sT, sXB = 28, 29, 30, 31
sONE, sMA, sMB, sTMP = 32, 34, 36, 38
sSOF = 40
s4096 = 48
sM1, sM2 = 50, 66
sANY16, sANY32 = 82, 84
sNS, sR, sMORE, sFIRST = 86, 87, 88, 89
sA, sB, sC, sD = 90, 91, 92, 93
sLAST = 94
G0, G1, HV, X = 0, 16, 32, 48
AE, B0, B1 = 64, 68, 72
DEN0, NUM0, DEN1, NUM1 = 76, 78, 80, 82
IDX = 84
XA = 92
P1, P2, P2I, P3 = 96, 97, 98, 99
ADC, ADN = 100, 102
NRA, NRB = 104, 105
LANEC, FIRSTA, HEADA = 106, 107, 108
T0, T1, T2 = 109, 110, 111
AU = 112
OFFR = 160
TID, LANE = 168, 169
NV = 172
aWB, aWV, aXR, aTOT = 0, 32, 64, 68
NA = 84

A(f".globl {NAME}_kernel")
A(".p2align 8")
A(f".type {NAME}_kernel,@function")
L(f"{NAME}_kernel")
I(f"s_cmp_ge_u32 s2, {NB}")
I("s_cbranch_scc1 K2_end")
I(f"s_load_dwordx2 s[{sX}:{sX+1}], s[0:1], 0")
I(f"s_load_dwordx2 s[{sOUT}:{sOUT+1}], s[0:1], 72")
I(f"s_load_dwordx2 s[{sREC}:{sREC+1}], s[0:1], 88")
I(f"v_mov_b32 v{TID}, v0")
I(f"v_and_b32 v{LANE}, 63, v0")
I("v_lshrrev_b32 v1, 6, v0")
I("s_nop 0")
I(f"v_readfirstlane_b32 s{sW}, v1")
I(f"v_lshrrev_b32 v2, 4, v{LANE}")
I(f"v_lshl_add_u32 v3, v1, 2, v2")
I("s_lshl_b32 s3, s2, 2")
I(f"v_lshl_add_u32 v4, v3, 13, s3")
I(f"s_mov_b32 s{sA}, {8*CHB}")
I(f"v_mul_lo_u32 v{T0}, v3, s{sA}")
I(f"s_movk_i32 s{s4096}, 4096")
I(f"s_mul_i32 s{sB}, s2, {BN}")
I(f"s_add_u32 s{sC}, s{sB}, {BN}")
I(f"s_min_u32 s{sC}, s{sC}, {N}")
I(f"s_lshl_b32 s{sC}, s{sC}, 7")
I("s_waitcnt lgkmcnt(0)")
I(f"s_add_u32 s{sOFF}, s{sREC}, {WS_OFF}")
I(f"s_addc_u32 s{sOFF+1}, s{sREC+1}, 0")
srd(sOFF, sOFF, sOFF + 1, NCH * 1024)
I("v_add_u32 v15, 4096, v4")
for i in range(8):
    I(f"buffer_load_dword v{OFFR+i}, v{4 if i < 4 else 15}, s[{sOFF}:{sOFF+3}], 0 offen offset:{(i%4)*1024}")
I(f"s_add_u32 s{sWF}, s{sREC}, {WS_WF}")
I(f"s_addc_u32 s{sWF+1}, s{sREC+1}, 0")
srd(sWF, sWF, sWF + 1, WF_BYTES)
srd(sREC, sREC, sREC + 1, WS_OFF)
srd(sXN, sX, sX + 1, f"s{sC}")
srd(sOUT, sOUT, sOUT + 1, f"s{sC}")
srd(sX, sX, sX + 1, N, stride=128)
I(f"v_and_b32 v5, 31, v{LANE}")
I(f"v_lshrrev_b32 v6, 5, v{LANE}")
I(f"s_and_b32 s{sD}, s{sW}, 1")
I(f"s_lshl_b32 s{sD}, s{sD}, 5")
I(f"s_add_u32 s{sD}, s{sD}, s{sB}")
I(f"v_add_u32 v7, s{sD}, v5")
I("v_lshlrev_b32 v7, 7, v7")
I("v_lshl_add_u32 v7, v6, 4, v7")
for s in range(4):
    I(f"buffer_load_dwordx4 v[{AU+4*s}:{AU+4*s+3}], v7, s[{sXN}:{sXN+3}], 0 offen offset:{32*s}")
I(f"v_lshlrev_b32 v8, 4, v{LANE}")
I(f"s_lshr_b32 s{sD}, s{sW}, 1")
I(f"s_lshl_b32 s{sD}, s{sD}, 12")
I(f"s_add_u32 s{sD}, s{sD}, 16384")
for s in range(4):
    I(f"buffer_load_dwordx4 v[{AU+16+4*s}:{AU+16+4*s+3}], v8, s[{sWF}:{sWF+3}], s{sD} offen offset:{1024*s}")
I(f"s_movk_i32 s{sA}, 8192")
I(f"s_movk_i32 s{sD}, 12288")
for f in range(16):
    so = ["0", f"s{s4096}", f"s{sA}", f"s{sD}"][f // 4]
    I(f"buffer_load_dwordx4 a[{4*f}:{4*f+3}], v8, s[{sWF}:{sWF+3}], {so} offen offset:{1024*(f%4)}")
I(f"v_lshlrev_b32 v9, 3, v{LANE}")
I(f"s_mov_b32 s{sA}, 32768")
I(f"buffer_load_dwordx2 v[{B0}:{B0+1}], v9, s[{sWF}:{sWF+3}], s{sA} offen")
I(f"buffer_load_dwordx2 v[{B1}:{B1+1}], v9, s[{sWF}:{sWF+3}], s{sA} offen offset:512")
I(f"s_lshl_b32 s{sA}, s{sB}, 7")
I(f"v_lshl_add_u32 v10, v{TID}, 4, s{sA}")
I(f"buffer_load_dwordx4 a[{aXR}:{aXR+3}], v10, s[{sXN}:{sXN+3}], 0 offen")
NPRE = 4 + 4 + 16 + 2 + 1
for i in range(1, 8):
    I(f"s_mov_b32 s{sSOF+i}, {i*CHB}")
I(f"s_mov_b32 s{sONE}, 1.0")
I(f"s_mov_b32 s{sONE+1}, 1.0")
I(f"s_mov_b32 s{sCONS}, 0")
I(f"s_mov_b32 s{sFIRST}, 1")
I(f"s_lshl_b32 s{sXB}, s{sW}, 12")
I(f"s_add_u32 s{sXB}, s{sXB}, {L_XB}")
I("v_bfe_u32 v11, v5, 1, 3")
I("v_xor_b32 v11, v11, v6")
I("v_lshlrev_b32 v11, 4, v11")
I("v_lshl_add_u32 v11, v5, 7, v11")
I(f"v_add_u32 v{XA}, s{sXB}, v11")
for s in range(1, 4):
    I(f"v_xor_b32 v12, {32*s}, v11")
    I(f"v_add_u32 v{XA+s}, s{sXB}, v12")
I(f"v_and_b32 v12, 7, v{LANE}")
I("v_xor_b32 v12, v12, v2")
I(f"v_lshlrev_b32 v{IDX+1}, 4, v12")
I(f"v_xor_b32 v{IDX+3}, 64, v{IDX+1}")
I(f"v_mov_b32 v{IDX+5}, v{IDX+1}")
I(f"v_mov_b32 v{IDX+7}, v{IDX+3}")
I(f"v_lshlrev_b32 v{LANEC}, 2, v5")
I(f"v_add_u32 v{LANEC}, {L_T}, v{LANEC}")
I("v_bfe_u32 v12, v5, 2, 1")
I("v_lshrrev_b32 v13, 4, v5")
I("v_mov_b32 v14, 0x3f803f80")
I("v_cmp_eq_u32 vcc, v12, v6")
I("s_nop 1")
I("v_cndmask_b32 v14, 0, v14, vcc")
I("v_cmp_eq_u32 vcc, 0, v13")
I("s_nop 1")
I(f"v_cndmask_b32 v{AE+2}, 0, v14, vcc")
I(f"v_sub_u32 v{AE+3}, v14, v{AE+2}")
I(f"v_lshlrev_b32 v12, 6, v6")
I(f"v_sub_u32 v{P2I}, 128, v12")
I(f"s_lshl_b32 s{sA}, s{sW}, 1")
I(f"s_add_u32 s{sA}, s{sA}, 50")
I(f"v_add_u32 v12, s{sA}, v6")
I(f"v_lshl_add_u32 v{HEADA}, v12, 8, v{LANEC}")

def lds_init():
    I("v_mov_b32 v16, 0")
    I("v_mov_b32 v17, 0")
    I("v_mov_b32 v18, 0")
    I("v_mov_b32 v19, 0")
    I(f"v_lshlrev_b32 v20, 4, v{TID}")
    I(f"v_add_u32 v21, {L_T}, v20")
    I(f"ds_write_b128 v21, v[16:19] offset:{T_NUM}")
    I(f"ds_write_b128 v21, v[16:19] offset:{T_DEN}")
    I(f"s_movk_i32 s{sA}, 288")
    I(f"v_cmp_gt_u32 vcc, s{sA}, v{TID}")
    I(f"s_and_saveexec_b64 s[{sTMP}:{sTMP+1}], vcc")
    I(f"ds_write_b128 v21, v[16:19] offset:{T_NUM+8192}")
    I(f"ds_write_b128 v21, v[16:19] offset:{T_DEN+8192}")
    I(f"s_movk_i32 s{sA}, 320")
    I(f"s_mov_b64 exec, s[{sTMP}:{sTMP+1}]")
    I(f"v_cmp_gt_u32 vcc, s{sA}, v{TID}")
    I(f"s_and_saveexec_b64 s[{sTMP}:{sTMP+1}], vcc")
    I(f"v_lshrrev_b32 v22, 6, v{TID}")
    I("v_cmp_eq_u32 vcc, 2, v22")
    I("v_mov_b32 v23, 0xffff")
    I(f"v_lshlrev_b32 v20, 2, v{TID}")
    I("v_cndmask_b32 v22, 0, v23, vcc")
    I(f"v_add_u32 v20, {L_MISC}, v20")
    I("ds_write_b32 v20, v22")
    I(f"s_mov_b64 exec, s[{sTMP}:{sTMP+1}]")

lds_init()
I("s_waitcnt lgkmcnt(0)")
I("s_barrier")
I(f"s_waitcnt vmcnt({NPRE})")
L("K2_recs")
I(f"v_and_b32 v{T1}, 15, v{LANE}")
I(f"v_add_u32 v{T1}, s{sCONS}, v{T1}")
I(f"v_add_u32 v{T2}, 16, v{T1}")
I(f"v_add_u32 v{NRA}, 32, v{T1}")
I(f"s_mov_b64 s[{sANY16}:{sANY16+1}], 0")
I(f"s_mov_b64 s[{sANY32}:{sANY32+1}], 0")
for i in range(8):
    I(f"v_lshrrev_b32 v{NRB}, 16, v{OFFR+i}")
    I(f"v_and_b32 v{OFFR+i}, 0xffff, v{OFFR+i}")
    I(f"v_cmp_lt_u32 s[{sM1+2*i}:{sM1+2*i+1}], v{T1}, v{NRB}")
    I(f"v_add_u32 v{OFFR+i}, v{OFFR+i}, v{T1}")
    I(f"v_cmp_lt_u32 s[{sM2+2*i}:{sM2+2*i+1}], v{T2}, v{NRB}")
    I(f"v_mad_u32_u24 v{OFFR+i}, v{OFFR+i}, 12, v{T0}")
    I(f"v_cmp_lt_u32 vcc, v{NRA}, v{NRB}")
    I(f"s_mov_b64 exec, s[{sM1+2*i}:{sM1+2*i+1}]")
    so = "0" if i == 0 else f"s{sSOF+i}"
    I(f"buffer_load_dwordx3 v[{4*i}:{4*i+2}], v{OFFR+i}, s[{sREC}:{sREC+3}], {so} offen")
    I("s_mov_b64 exec, -1")
    I(f"s_or_b64 s[{sANY32}:{sANY32+1}], s[{sANY32}:{sANY32+1}], vcc")
    I(f"s_or_b64 s[{sANY16}:{sANY16+1}], s[{sANY16}:{sANY16+1}], s[{sM2+2*i}:{sM2+2*i+1}]")
for i in range(8):
    I(f"s_mov_b64 exec, s[{sM2+2*i}:{sM2+2*i+1}]")
    so = "0" if i == 0 else f"s{sSOF+i}"
    I(f"buffer_load_dwordx3 v[{32+4*i}:{32+4*i+2}], v{OFFR+i}, s[{sREC}:{sREC+3}], {so} offen offset:192")
I("s_mov_b64 exec, -1")
I(f"s_cmp_lg_u64 s[{sANY16}:{sANY16+1}], 0")
I(f"s_cselect_b32 s{sA}, 1, 0")
I(f"s_cmp_lg_u64 s[{sANY32}:{sANY32+1}], 0")
I(f"s_cselect_b32 s{sB}, 2, 0")
I(f"s_or_b32 s{sA}, s{sA}, s{sB}")
I(f"v_mov_b32 v{T1}, s{sA}")
I(f"v_mov_b32 v{T2}, {L_MISC}")
I("s_mov_b64 exec, 1")
I(f"ds_or_b32 v{T2}, v{T1} offset:{M_FLAG}")
I("s_mov_b64 exec, -1")
I(f"s_cmp_eq_u32 s{sFIRST}, 0")
I("s_cbranch_scc1 K2_hist")
I(f"s_waitcnt vmcnt({16 + NPRE - 8})")
DU = AU + 32
for s_ in range(4):
    c_in = "0" if s_ == 0 else f"v[{DU}:{DU+15}]"
    I(f"v_mfma_f32_32x32x16_bf16 v[{DU}:{DU+15}], v[{AU+4*s_}:{AU+4*s_+3}], v[{AU+16+4*s_}:{AU+16+4*s_+3}], {c_in}")
I(f"s_and_b32 s{sA}, s{sW}, 1")
I(f"s_lshl_b32 s{sA}, s{sA}, 13")
I(f"s_and_b32 s{sB}, s{sW}, 2")
I(f"s_lshl_b32 s{sB}, s{sB}, 6")
I(f"s_add_u32 s{sA}, s{sA}, s{sB}")
I(f"v_lshrrev_b32 v{T1}, 5, v{LANE}")
I(f"v_lshl_add_u32 v{T1}, v{T1}, 10, v{LANEC}")
I(f"v_add_u32 v{T1}, s{sA}, v{T1}")
I(f"s_mov_b32 s{sB}, {NLOG2E:#x}")
I("s_nop 7")
I("s_nop 3")
I(f"s_cmp_ge_u32 s{sW}, 4")
I("s_cbranch_scc1 K2_uwr")
for r in range(16):
    t = AU + (r % 4) * 2
    I(f"v_mul_f32 v{DU+r}, s{sB}, v{DU+r}")
    I(f"v_cvt_pk_bf16_f32 v{t}, v{DU+r}, v{DU+r}")
    I(f"v_lshlrev_b32 v{t}, 16, v{t}")
    I(f"v_sub_f32 v{t}, v{DU+r}, v{t}")
    I(f"v_cvt_pk_bf16_f32 v{DU+r}, v{DU+r}, v{t}")
    I(f"ds_write_b32 v{T1}, v{DU+r} offset:{T_ATAB + (8*(r>>2) + (r&3))*256}")
I("s_branch K2_hist")
L("K2_uwr")
I(f"v_add_u32 v{T1}, {L_UT - L_T}, v{T1}")
for r in range(16):
    I(f"ds_write_b32 v{T1}, v{DU+r} offset:{(8*(r>>2) + (r&3))*256}")
L("K2_hist")
ND = AU
I(f"v_mov_b32 v{T2}, 1")
I(f"s_mov_b32 s{sA}, {L_MISC}")
for k in range(16):
    m = (sM1 if k < 8 else sM2) + 2 * (k % 8)
    I(f"s_waitcnt vmcnt({15-k})")
    I(f"v_and_b32 v{ND+k}, 0xff, v{4*k+2}")
    I(f"v_add_u32 v{ND+16+k}, s{sA}, v{ND+k}")
    I(f"s_mov_b64 exec, s[{m}:{m+1}]")
    I(f"ds_add_rtn_u32 v{4*k+3}, v{ND+16+k}, v{T2} offset:{M_CNT1 if k < 8 else M_CNT2}")
    I("s_mov_b64 exec, -1")
I(f"v_lshl_add_u32 v{T1}, v{LANE}, 2, s{sA}")
I(f"v_mov_b32 v{NRA}, s{sA}")
I("s_waitcnt lgkmcnt(0)")
I("s_barrier")
C1, C2, FL, TOT, PP, SC, BS1, BS2 = 144, 145, 146, 147, 148, 149, 150, 151
I(f"ds_read2st64_b32 v[{C1}:{C2}], v{T1} offset0:0 offset1:1")
I(f"ds_read_b32 v{FL}, v{NRA} offset:{M_FLAG}")
I(f"s_mov_b32 s{sR}, 32")
I("s_waitcnt lgkmcnt(0)")
I(f"v_readfirstlane_b32 s{sMORE}, v{FL}")
L("K2_scan")
I(f"v_add_u32 v{TOT}, v{C1}, v{C2}")
I(f"v_add_u32 v{PP}, 7, v{TOT}")
I(f"v_and_b32 v{PP}, -8, v{PP}")
I(f"v_mov_b32 v{SC}, v{PP}")
wave_scan(SC)
I("s_nop 0")
I(f"v_readlane_b32 s{sNS}, v{SC}, 63")
I(f"v_sub_u32 v{BS1}, v{SC}, v{PP}")
I(f"v_add_u32 v{BS2}, v{BS1}, v{C1}")
I(f"s_cmp_gt_u32 s{sNS}, {CAPLIM}")
I("s_cbranch_scc1 K2_shrink")
for k in range(16):
    I(f"ds_bpermute_b32 v{ND+k}, v{ND+k}, v{BS1 if k < 8 else BS2}")
I(f"s_lshr_b32 s{sA}, s{sR}, 4")
I(f"s_and_b32 s{sMORE}, s{sMORE}, s{sA}")
I(f"s_add_u32 s{sA}, s{sNS}, 31")
I(f"s_lshr_b32 s{sA}, s{sA}, 5")
I(f"s_add_u32 s{sT}, s{sA}, 7")
I(f"s_sub_u32 s{sT}, s{sT}, s{sW}")
I(f"s_lshr_b32 s{sT}, s{sT}, 3")
I(f"s_lshr_b32 s{sB}, s{sA}, 3")
I(f"s_mul_i32 s{sB}, s{sB}, s{sW}")
I(f"s_and_b32 s{sA}, s{sA}, 7")
I(f"s_min_u32 s{sA}, s{sA}, s{sW}")
I(f"s_add_u32 s{sB}, s{sB}, s{sA}")
I(f"s_lshl_b32 s{sB}, s{sB}, 5")
I(f"s_lshl_b32 s{sC}, s{sT}, 4")
PW, PZ = 152, 154
I(f"v_mov_b32 v{PW}, {PADW:#x}")
I(f"v_mov_b32 v{PZ}, 0")
I(f"v_mov_b32 v{PZ+1}, 0")
I(f"v_add_u32 v{TOT}, s{sW}, v{TOT}")
I(f"v_cmp_lt_u32 vcc, v{TOT}, v{PP}")
I(f"v_add_lshl_u32 v{C1}, v{BS1}, v{TOT}, 2")
I(f"v_lshlrev_b32 v{C2}, 1, v{C1}")
I(f"s_mov_b64 exec, vcc")
I(f"ds_write_b32 v{C1}, v{PW} offset:{L_S4}")
I(f"ds_write_b64 v{C2}, v[{PZ}:{PZ+1}] offset:{L_E8}")
I(f"s_mov_b64 exec, 0xffff")
I(f"s_lshl_b32 s{sA}, s{sW}, 4")
I(f"s_add_u32 s{sA}, s{sA}, s{sNS}")
I(f"v_add_lshl_u32 v{C1}, v{LANE}, s{sA}, 2")
I(f"v_lshlrev_b32 v{C2}, 1, v{C1}")
I(f"ds_write_b32 v{C1}, v{PW} offset:{L_S4}")
I(f"ds_write_b64 v{C2}, v[{PZ}:{PZ+1}] offset:{L_E8}")
I("s_mov_b64 exec, -1")
I("s_waitcnt lgkmcnt(4)")
for k in range(16):
    m = (sM1 if k < 8 else sM2) + 2 * (k % 8)
    I(f"v_add_lshl_u32 v{ND+k}, v{ND+k}, v{4*k+3}, 2")
    I(f"v_lshlrev_b32 v{4*k+3}, 1, v{ND+k}")
    I(f"s_mov_b64 exec, s[{m}:{m+1}]")
    I(f"ds_write_b32 v{ND+k}, v{4*k+2} offset:{L_S4}")
    I(f"ds_write_b64 v{4*k+3}, v[{4*k}:{4*k+1}] offset:{L_E8}")
    I("s_mov_b64 exec, -1")
I(f"v_lshrrev_b32 v{T1}, 5, v{LANE}")
I(f"v_mov_b32 v{T2}, s{sB}")
I(f"v_mad_u32_u24 v{P3}, v{T1}, s{sC}, v{T2}")
I(f"v_bfe_u32 v{NRA}, v{LANE}, 3, 2")
I(f"v_add_u32 v{P1}, v{P3}, v{NRA}")
I(f"v_lshlrev_b32 v{P3}, 2, v{P3}")
I(f"v_lshl_add_u32 v{P1}, v{P1}, 2, 2")
I(f"v_bfe_u32 v{NRA}, v{LANE}, 2, 1")
I(f"v_mad_u32_u24 v{P2}, v{NRA}, s{sC}, v{T2}")
I(f"v_bfe_u32 v{NRA}, v{LANE}, 3, 2")
I(f"v_lshl_add_u32 v{P2}, v{NRA}, 2, v{P2}")
I(f"v_and_b32 v{NRA}, 3, v{LANE}")
I(f"v_add_u32 v{P2}, v{P2}, v{NRA}")
I(f"v_lshlrev_b32 v{NRA}, 2, v{P2}")
I(f"v_lshlrev_b32 v{NRB}, 3, v{P2}")
I(f"v_add_u32 v{NRB}, {L_E8}, v{NRB}")
I(f"v_cmp_eq_u32 vcc, 1, v{T1}")
for r in (DEN0, NUM0, DEN1, NUM1):
    I(f"v_mov_b64 v[{r}:{r+1}], 0")
I(f"v_cndmask_b32 v{P2}, v{NRB}, v{NRA}, vcc")
I("s_waitcnt lgkmcnt(0)")
I("s_barrier")
I(f"s_cmp_eq_u32 s{sT}, 0")
I("s_cbranch_scc1 K2_done")

def idx_reads():
    return [f"ds_read_u16 v{IDX+2*j}, v{P1} offset:{L_S4 + 16*j}" for j in range(4)] + [f"v_add_u32 v{P1}, 64, v{P1}"]
def dma(j):
    m = f"s_mov_b32 m0, s{sXB}" if j == 0 else "s_add_u32 m0, m0, 1024"
    return [m, None, f"buffer_load_dwordx4 v[{IDX+2*j}:{IDX+2*j+1}], s[{sX}:{sX+3}], 0 idxen offen lds"]
def node_reads():
    return [f"ds_read_u8 v{NRA}, v{P3} offset:{L_S4}", f"ds_read_u8 v{NRB}, v{P3} offset:{L_S4+32}", f"v_add_u32 v{P3}, 64, v{P3}"]
def mf(d, a, b, first):
    c = "0" if first else f"v[{d}:{d+15}]"
    return f"v_mfma_f32_32x32x16_bf16 v[{d}:{d+15}], {a}, {b}, {c}"
def xr(s):
    return f"v[{X+4*s}:{X+4*s+3}]"

for x in idx_reads(): I(x)
for x in node_reads(): I(x)
I(f"ds_read2_b32 v[{AE}:{AE+1}], v{P2} offset0:0 offset1:1")
I(f"v_add_u32 v{P2}, v{P2}, v{P2I}")
I("s_waitcnt lgkmcnt(3)")
for j in range(4):
    m, _, ld = dma(j)
    I(m); I("s_nop 0"); I(ld)
I("s_waitcnt lgkmcnt(1)")
I(f"v_lshl_add_u32 v{ADC}, v{NRA}, 6, v{LANEC}")
I(f"v_lshl_add_u32 v{ADC+1}, v{NRB}, 6, v{LANEC}")
I(f"v_mov_b32 v{FIRSTA}, v{ADC}")
I(f"ds_read_b32 v{B0+2}, v{ADC} offset:{T_ATAB}")
I(f"ds_read_b32 v{B0+3}, v{ADC+1} offset:{T_ATAB}")
I(f"ds_read_b32 v{B1+2}, v{ADC} offset:{T_ATAB+128}")
I(f"ds_read_b32 v{B1+3}, v{ADC+1} offset:{T_ATAB+128}")
I(f"v_add_u32 v{T0}, {L_MISC}, v{NRA}")
I(f"s_lshl_b32 s{sA}, s{sW}, 1")
I(f"v_add_u32 v{T1}, s{sA}, v{T1}")
I(f"v_mov_b32 v{T2}, 1")
I(f"s_mov_b32 exec_lo, 1")
I(f"s_mov_b32 exec_hi, 1")
I(f"ds_min_u32 v{T0}, v{T1} offset:{M_LMIN}")
I(f"ds_add_u32 v{T0}, v{T2} offset:{M_LCNT}")
I("s_mov_b64 exec, -1")
for x in idx_reads(): I(x)
for x in node_reads(): I(x)
I("s_waitcnt vmcnt(0)")
for s_ in range(4):
    I(f"ds_read_b128 {xr(s_)}, v{XA+s_}")
I("s_waitcnt lgkmcnt(0)")
for j in range(4):
    m, _, ld = dma(j)
    I(m); I("s_nop 0"); I(ld)
I(mf(G0, f"v[{AE}:{AE+3}]", f"v[{B0}:{B0+3}]", True))
for s_ in range(4):
    I(mf(G0, xr(s_), ar(aWB + 4 * s_, 4), False))
I("s_nop 7")
I("s_nop 7")

def phase(trans, ins):
    for p in range(17):
        for x in ins.get(p, []):
            I(x)
        if p < 16:
            I(trans[p])

def add1(g):
    for k in range(8):
        I(f"v_pk_add_f32 v[{g+2*k}:{g+2*k+1}], v[{g+2*k}:{g+2*k+1}], s[{sONE}:{sONE+1}]")

def acc(g, den, num, c):
    for grp in range(2):
        for k in range(4 * grp, 4 * grp + 4):
            I(f"v_pk_add_f32 v[{den}:{den+1}], v[{den}:{den+1}], v[{g+2*k}:{g+2*k+1}]")
            I(f"v_pk_fma_f32 v[{num}:{num+1}], v[{g+2*k}:{g+2*k+1}], v[{HV+2*k}:{HV+2*k+1}], v[{num}:{num+1}]")
        m = sMA if grp == 0 else sMB
        I(f"s_cmp_lg_u64 s[{m}:{m+1}], 0")
        I(f"s_cbranch_scc1 K2_fl{c}{grp}")
        L(f"K2_bk{c}{grp}")

A(".p2align 3")
L("K2_loop")
exp = lambda g: [f"v_exp_f32 v{g+k}, v{g+k}" for k in range(16)]
rcp = lambda g: [f"v_rcp_f32 v{g+k}, v{g+k}" for k in range(16)]
phase(exp(G0), {
    0: [mf(HV, xr(0), ar(aWV, 4), True), f"s_cmp_eq_u32 s{sT}, 1", f"s_cselect_b64 s[{sLAST}:{sLAST+1}], -1, 0"],
    3: [mf(HV, xr(1), ar(aWV + 4, 4), False)],
    6: [mf(HV, xr(2), ar(aWV + 8, 4), False)],
    9: [mf(HV, xr(3), ar(aWV + 12, 4), False), "s_waitcnt lgkmcnt(0)",
        f"v_lshl_add_u32 v{ADN}, v{NRA}, 6, v{LANEC}", f"v_lshl_add_u32 v{ADN+1}, v{NRB}, 6, v{LANEC}",
        f"v_cmp_ne_u32 s[{sMA}:{sMA+1}], v{ADC}, v{ADC+1}", f"v_cmp_ne_u32 s[{sMB}:{sMB+1}], v{ADC+1}, v{ADN}"],
    11: [f"ds_read_b32 v{B0+2}, v{ADN} offset:{T_ATAB}", f"ds_read_b32 v{B0+3}, v{ADN+1} offset:{T_ATAB}"],
    14: [f"s_or_b64 s[{sMB}:{sMB+1}], s[{sMB}:{sMB+1}], s[{sLAST}:{sLAST+1}]"],
})
add1(G0)
ir = idx_reads()
phase(rcp(G0), {
    0: [mf(G1, f"v[{AE}:{AE+3}]", f"v[{B1}:{B1+3}]", True)],
    2: [f"ds_read2_b32 v[{AE}:{AE+1}], v{P2} offset0:0 offset1:1",
        f"ds_read_b32 v{B1+2}, v{ADN} offset:{T_ATAB+128}", f"ds_read_b32 v{B1+3}, v{ADN+1} offset:{T_ATAB+128}"],
    3: [mf(G1, xr(0), ar(aWB + 16, 4), False)],
    4: ir[0:2], 5: ir[2:4],
    6: [mf(G1, xr(1), ar(aWB + 20, 4), False)],
    9: [mf(G1, xr(2), ar(aWB + 24, 4), False)],
    12: [mf(G1, xr(3), ar(aWB + 28, 4), False), ir[4], f"v_add_u32 v{P2}, v{P2}, v{P2I}"],
})
acc(G0, DEN0, NUM0, 0)
phase(exp(G1), {
    0: [mf(HV, xr(0), ar(aWV + 16, 4), True), "s_waitcnt vmcnt(0)"],
    1: [f"ds_read_b128 {xr(0)}, v{XA}"],
    3: [mf(HV, xr(1), ar(aWV + 20, 4), False)],
    4: [f"ds_read_b128 {xr(1)}, v{XA+1}"],
    6: [mf(HV, xr(2), ar(aWV + 24, 4), False)],
    7: [f"ds_read_b128 {xr(2)}, v{XA+2}"],
    9: [mf(HV, xr(3), ar(aWV + 28, 4), False)],
    10: [f"ds_read_b128 {xr(3)}, v{XA+3}"],
})
add1(G1)
nr = node_reads()
d = [dma(j) for j in range(4)]
phase(rcp(G1), {
    0: ["s_waitcnt lgkmcnt(0)", mf(G0, f"v[{AE}:{AE+3}]", f"v[{B0}:{B0+3}]", True), d[0][0]],
    1: [d[0][2], d[1][0]],
    2: [d[1][2], d[2][0]],
    3: [mf(G0, xr(0), ar(aWB, 4), False), d[2][2], d[3][0]],
    4: [d[3][2]],
    5: nr[0:2],
    6: [mf(G0, xr(1), ar(aWB + 4, 4), False)],
    9: [mf(G0, xr(2), ar(aWB + 8, 4), False)],
    12: [mf(G0, xr(3), ar(aWB + 12, 4), False), nr[2]],
})
acc(G1, DEN1, NUM1, 1)
I(f"v_mov_b64 v[{ADC}:{ADC+1}], v[{ADN}:{ADN+1}]")
I(f"s_sub_u32 s{sT}, s{sT}, 1")
I(f"s_cmp_lg_u32 s{sT}, 0")
I("s_cbranch_scc1 K2_loop")
L("K2_done")
I("s_waitcnt vmcnt(0) lgkmcnt(0)")
I("s_barrier")
EN, ED, EH, EU = 0, 8, 16, 32
I(f"v_lshrrev_b32 v48, 3, v{TID}")
I(f"s_mov_b32 s{sA}, {L_MISC}")
I(f"v_lshl_add_u32 v49, v48, 2, s{sA}")
I(f"ds_read2st64_b32 v[50:51], v49 offset0:{M_LMIN//256} offset1:{M_LCNT//256}")
I(f"v_and_b32 v52, 7, v{TID}")
I(f"v_lshlrev_b32 v52, 5, v52")
I(f"v_add_u32 v52, {L_T}, v52")
I(f"v_lshl_add_u32 v53, v48, 8, v52")
I(f"ds_read_b128 v[{EN}:{EN+3}], v53 offset:{T_NUM}")
I(f"ds_read_b128 v[{EN+4}:{EN+7}], v53 offset:{T_NUM+16}")
I(f"ds_read_b128 v[{ED}:{ED+3}], v53 offset:{T_DEN}")
I(f"ds_read_b128 v[{ED+4}:{ED+7}], v53 offset:{T_DEN+16}")
I(f"ds_read_b128 v[{EU}:{EU+3}], v53 offset:{L_UT-L_T}")
I(f"ds_read_b128 v[{EU+4}:{EU+7}], v53 offset:{L_UT-L_T+16}")
I(f"v_cmp_gt_u32 vcc, {BN}, v48")
I("s_waitcnt lgkmcnt(6)")
I("v_cndmask_b32 v51, 0, v51, vcc")
I("v_add_u32 v50, 50, v50")
L("K2_heads")
I("v_cmp_lt_u32 vcc, 0, v51")
I(f"v_mov_b32 v54, {BN}")
I("s_nop 0")
I("v_cndmask_b32 v54, v54, v50, vcc")
I(f"v_lshl_add_u32 v54, v54, 8, v52")
I(f"ds_read_b128 v[{EH}:{EH+3}], v54 offset:{T_NUM}")
I(f"ds_read_b128 v[{EH+4}:{EH+7}], v54 offset:{T_NUM+16}")
I(f"ds_read_b128 v[{EH+8}:{EH+11}], v54 offset:{T_DEN}")
I(f"ds_read_b128 v[{EH+12}:{EH+15}], v54 offset:{T_DEN+16}")
I("v_add_u32 v50, 1, v50")
I("v_max_u32 v51, 1, v51")
I("v_add_u32 v51, -1, v51")
I("v_cmp_lt_u32 vcc, 0, v51")
I("s_waitcnt lgkmcnt(0)")
for k in range(8):
    I(f"v_pk_add_f32 v[{EN+2*k}:{EN+2*k+1}], v[{EN+2*k}:{EN+2*k+1}], v[{EH+2*k}:{EH+2*k+1}]")
I("s_cbranch_vccnz K2_heads")
I(f"s_cmp_eq_u32 s{sFIRST}, 1")
I("s_cbranch_scc1 K2_nocarry")
for k in range(16):
    I(f"v_accvgpr_read_b32 v{EH+k}, a{aTOT+k}")
for k in range(8):
    I(f"v_pk_add_f32 v[{EN+2*k}:{EN+2*k+1}], v[{EN+2*k}:{EN+2*k+1}], v[{EH+2*k}:{EH+2*k+1}]")
L("K2_nocarry")
I(f"s_cmp_lg_u32 s{sMORE}, 0")
I("s_cbranch_scc1 K2_next")
for k in range(4):
    I(f"v_accvgpr_read_b32 v{EH+k}, a{aXR+k}")
I(f"s_mov_b32 s{sA}, 0x358637bd")
for k in range(8):
    I(f"v_add_f32 v{ED+k}, s{sA}, v{ED+k}")
for k in range(8):
    I(f"v_rcp_f32 v{ED+k}, v{ED+k}")
for k in range(4):
    I(f"v_lshlrev_b32 v{EH+8+2*k}, 16, v{EH+k}")
    I(f"v_and_b32 v{EH+9+2*k}, 0xffff0000, v{EH+k}")
for k in range(8):
    I(f"v_fma_f32 v{EN+k}, v{EN+k}, v{ED+k}, v{EU+k}")
for k in range(8):
    I(f"v_cmp_lt_f32 vcc, 0, v{EN+k}")
    I(f"v_mul_f32 v{ED+k}, 0, v{EN+k}")
    I("s_nop 0")
    I(f"v_cndmask_b32 v{EN+k}, v{ED+k}, v{EN+k}, vcc")
for k in range(8):
    I(f"v_add_f32 v{EN+k}, v{EN+k}, v{EH+8+k}")
for k in range(4):
    I(f"v_cvt_pk_bf16_f32 v{ED+k}, v{EN+2*k}, v{EN+2*k+1}")
I(f"s_mul_i32 s{sA}, s2, {BN*128}")
I(f"v_lshl_add_u32 v48, v{TID}, 4, s{sA}")
I(f"buffer_store_dwordx4 v[{ED}:{ED+3}], v48, s[{sOUT}:{sOUT+3}], 0 offen")
L("K2_end")
I("s_endpgm")

for c in range(2):
    den, num = (DEN0, NUM0) if c == 0 else (DEN1, NUM1)
    for grp in range(2):
        m = sMA if grp == 0 else sMB
        L(f"K2_fl{c}{grp}")
        I(f"s_mov_b64 exec, s[{m}:{m+1}]")
        I(f"v_cmp_eq_u32 vcc, v{ADC+grp}, v{FIRSTA}")
        I(f"v_add_f32 v{T1}, v{num}, v{num+1}")
        I(f"v_add_f32 v{T2}, v{den}, v{den+1}")
        I(f"v_cndmask_b32 v{T0}, v{ADC+grp}, v{HEADA}, vcc")
        I(f"v_mov_b64 v[{num}:{num+1}], 0")
        I(f"v_mov_b64 v[{den}:{den+1}], 0")
        I(f"ds_write_b32 v{T0}, v{T1} offset:{T_NUM + 128*c}")
        I(f"ds_write_b32 v{T0}, v{T2} offset:{T_DEN + 128*c}")
        I("s_mov_b64 exec, -1")
        I(f"s_branch K2_bk{c}{grp}")

L("K2_shrink")
I(f"v_mov_b32 v{C2}, 0")
I(f"s_mov_b32 s{sR}, 16")
for i in range(8):
    I(f"s_mov_b64 s[{sM2+2*i}:{sM2+2*i+1}], 0")
I("s_branch K2_scan")

L("K2_next")
for k in range(16):
    I(f"v_accvgpr_write_b32 a{aTOT+k}, v{EN+k}")
I(f"s_mov_b32 s{sFIRST}, 0")
I(f"s_add_u32 s{sCONS}, s{sCONS}, s{sR}")
I(f"v_lshrrev_b32 v3, 4, v{TID}")
I("s_lshl_b32 s3, s2, 2")
I(f"v_lshl_add_u32 v4, v3, 13, s3")
I(f"s_mov_b32 s{sA}, {8*CHB}")
I(f"v_mul_lo_u32 v{T0}, v3, s{sA}")
I("v_add_u32 v15, 4096, v4")
for i in range(8):
    I(f"buffer_load_dword v{OFFR+i}, v{4 if i < 4 else 15}, s[{sOFF}:{sOFF+3}], 0 offen offset:{(i%4)*1024}")
I("s_barrier")
lds_init()
I("s_waitcnt vmcnt(0) lgkmcnt(0)")
I("s_barrier")
I("s_branch K2_recs")

A('.section .rodata,"a"')
def kd(name, nv, ns, acc):
    A(".p2align 6")
    A(f".amdhsa_kernel {name}")
    A(f"  .amdhsa_next_free_vgpr {nv}")
    A(f"  .amdhsa_next_free_sgpr {ns}")
    A(f"  .amdhsa_accum_offset {acc}")
    A("  .amdhsa_group_segment_fixed_size 0")
    A("  .amdhsa_kernarg_size 96")
    A("  .amdhsa_user_sgpr_count 2")
    A("  .amdhsa_user_sgpr_kernarg_segment_ptr 1")
    A("  .amdhsa_system_sgpr_workgroup_id_x 1")
    A(".end_amdhsa_kernel")
kd("bin_kernel", 48, 48, 48)
kd(f"{NAME}_kernel", NV + NA, 96, NV)

txt = "\n".join(x for x in out if x.strip() != "") + "\n"
dst = OPT.get("o", "cdna_kernels/" + NAME + ".s")
open(dst, "w").write(txt)
print("wrote", dst, len(txt), "bytes")
```

```python
import mb
PA, PB, G, IX, AE, BE, DEN, NUM = 0, 16, 32, 48, 64, 68, 72, 74
def init():
    s = "v_lshlrev_b32 v110, 2, v119\n"
    s += "v_lshlrev_b32 v111, 2, v0\n s_mov_b32 s30, 0\n s_mul_i32 s32, s2, 0x3779\n s_mov_b32 s33, 12500\n @san:\n ds_read_b32 v112, v111\n s_waitcnt lgkmcnt(0)\n"
    s += "v_add_u32 v112, s32, v112\n v_add_u32 v112, v111, v112\n s_mov_b32 s34, 0x9e3779b1\n v_mul_lo_u32 v112, v112, s34\n v_lshrrev_b32 v113, 15, v112\n v_xor_b32 v112, v112, v113\n v_mul_lo_u32 v112, v112, s34\n v_mul_hi_u32 v112, v112, s33\n v_lshlrev_b32 v112, 8, v112\n"
    s += "ds_write_b32 v111, v112\n v_add_u32 v111, 1024, v111\n s_add_u32 s30, s30, 1\n s_cmp_lt_u32 s30, 16\n s_cbranch_scc1 @san\n s_waitcnt lgkmcnt(0)\n s_barrier\n"
    s += "s_lshl_b32 s31, s13, 10\n v_mov_b32 v114, s31\n"
    s += "s_or_b32 s41, s41, 0x40000\n s_mov_b32 s43, 0x800000\n"
    s += "v_lshlrev_b32 v115, 3, v119\n v_add_u32 v115, 0x8000, v115\n v_add_u32 v116, 0x9000, v110\n"
    s += f"ds_read_b128 v[{AE}:{AE+3}], v115\n ds_read_b128 v[{BE}:{BE+3}], v115 offset:2048\n"
    s += "s_mov_b32 s20, 0x58800000\n s_mov_b32 s21, 0x58800000\n s_mov_b32 s22, 1.0\n s_mov_b32 s23, 1.0\n v_mov_b32 v80, 1.0\n v_mov_b32 v81, 1.0\n"
    s += "".join(f"v_mov_b32 v{r}, 0\n" for r in range(72, 76))
    s += idx() + "s_waitcnt lgkmcnt(0)\n" + "".join(ld(PA, j) for j in range(16)) + idx() + "s_waitcnt lgkmcnt(0)\n"
    return s
def idx():
    return "".join(f"ds_read_b128 v[{IX+4*j}:{IX+3+4*j}], v114 offset:{16*j}\n" for j in range(4)) + "v_add_u32 v114, 64, v114\n v_and_b32 v114, 0x3fff, v114\n"
def ld(P, j): return f"buffer_load_dword v{P+j}, v{IX+j}, s[40:43], 0 offen\n"
def p2(r): return f"v[{r}:{r+1}]"
def quad_pre(P, q):
    g, p = G + 4*q, P + 4*q
    return (f"v_pk_mul_f32 {p2(p)}, {p2(g+2)}, {p2(p)}\n v_pk_fma_f32 {p2(p)}, {p2(g)}, {p2(p+2)}, {p2(p)}\n"
            f"v_pk_add_f32 {p2(p+2)}, {p2(g)}, {p2(g+2)}\n v_pk_mul_f32 {p2(g)}, {p2(g)}, {p2(g+2)}\n")
def quad_rcp(q):
    g = G + 4*q
    return f"v_rcp_f32 v{g}, v{g}\n v_rcp_f32 v{g+1}, v{g+1}\n"
def quad_acc(P, q):
    g, p = G + 4*q, P + 4*q
    return f"v_pk_fma_f32 {p2(DEN)}, {p2(g)}, {p2(p+2)}, {p2(DEN)}\n v_pk_fma_f32 {p2(NUM)}, {p2(g)}, {p2(p)}, {p2(NUM)}\n"
def tile(Pc, Pn, spread, pair=True, loads=True):
    s = ""
    L = [ld(Pn, j) if loads else "" for j in range(16)]
    if not spread:
        s += "s_waitcnt lgkmcnt(0)\n" + "".join(L) + idx() + ("s_waitcnt vmcnt(16)\n" if loads else "")
    else:
        s += "s_waitcnt vmcnt(0) lgkmcnt(0)\n"
    for k in range(16):
        s += f"v_lshlrev_b32 v{G+k}, 16, v{Pc+k}\n"
        if spread and k % 4 == 3: s += L[k // 4]
    s += f"s_nop 1\n v_mfma_f32_32x32x16_bf16 v[{G}:{G+15}], v[{AE}:{AE+3}], v[{BE}:{BE+3}], v[{G}:{G+15}]\n"
    s += f"ds_read_b64 v[{AE}:{AE+1}], v115\n ds_read_b32 v{BE+2}, v116\n ds_read_b32 v{BE+3}, v116 offset:256\n s_cmp_eq_u32 s30, 77\n s_cbranch_scc1 @x\n s_cmp_eq_u32 s30, 78\n s_cbranch_scc1 @x\n"
    if spread:
        s += L[4] + L[5] + L[6] + L[7] + "s_nop 1\n"
    else:
        s += "s_nop 5\n"
    for k in range(16):
        s += f"v_exp_f32 v{G+k}, v{G+k} clamp\n" if pair else f"v_exp_f32 v{G+k}, v{G+k}\n"
        if spread and k % 2 == 1: s += L[8 + k // 2]
    if spread: s += idx()
    if pair:
        s += "".join(f"v_pk_fma_f32 {p2(G+2*k)}, {p2(G+2*k)}, s[20:21], v[80:81]\n" for k in range(8))
        for h in range(2):
            s += quad_pre(Pc, 2*h) + quad_pre(Pc, 2*h+1) + quad_rcp(2*h) + quad_rcp(2*h+1) + quad_acc(Pc, 2*h) + quad_acc(Pc, 2*h+1)
            s += "s_cmp_eq_u32 s30, 77\n s_cbranch_scc1 @x\n"
    else:
        s += "".join(f"v_pk_add_f32 {p2(G+2*k)}, {p2(G+2*k)}, s[22:23]\n" for k in range(8))
        s += "".join(f"v_rcp_f32 v{G+k}, v{G+k}\n" for k in range(16))
        for k in range(8):
            s += f"v_pk_add_f32 {p2(DEN)}, {p2(DEN)}, {p2(G+2*k)}\n v_pk_fma_f32 {p2(NUM)}, {p2(G+2*k)}, {p2(Pc+2*k)}, {p2(NUM)}\n"
            if k % 4 == 3: s += "s_cmp_eq_u32 s30, 77\n s_cbranch_scc1 @x\n"
    return s
def body(**kw): return tile(PA, PB, **kw) + tile(PB, PA, **kw) + "@x:\n"
K = {"pair burst": (init(), body(spread=False)), "pair spread": (init(), body(spread=True)),
     "nopair burst": (init(), body(spread=False, pair=False)), "nopair spread": (init(), body(spread=True, pair=False)),
     "pair noloads": (init(), body(spread=False, loads=False)), "nopair noloads": (init(), body(spread=False, pair=False, loads=False))}
mb.emit(K, "d2.s", nv=120, na=8)
```

```python
import sys, struct, subprocess, ctypes, os
sys.path.insert(0, "cdna_kernels")
import numpy as np

def emit(kernels, path, nv=160, na=96):
    s = ['.amdgcn_target "amdgcn-amd-amdhsa--gfx950"', ".text"]
    md = []
    for n, (name, (init, body)) in enumerate(kernels.items()):
        k = f"k{n}"
        s += [f".globl {k}", ".p2align 8", f".type {k},@function", f"{k}:"]
        s += ["s_load_dwordx4 s[4:7], s[0:1], 0", "s_load_dword s12, s[0:1], 16", "s_load_dwordx2 s[40:41], s[0:1], 24",
              "v_lshrrev_b32 v1, 6, v0", "s_nop 0", "v_readfirstlane_b32 s13, v1",
              "v_lshlrev_b32 v1, 4, v0", "s_waitcnt lgkmcnt(0)",
              "s_mov_b32 s8, s6", "s_and_b32 s9, s7, 0xffff", "s_mov_b32 s10, 0x100000", "s_mov_b32 s11, 0x20000",
              "s_and_b32 s5, s5, 0xffff", "s_mov_b32 s6, 0x100000", "s_mov_b32 s7, 0x20000",
              "s_and_b32 s41, s41, 0xffff", "s_mov_b32 s42, 0x10000000", "s_mov_b32 s43, 0x20000",
              "s_lshl_b32 s14, s2, 8", "s_mov_b32 s15, 0"]
        s += [f"F{n}:", "buffer_load_dwordx4 v[4:7], v1, s[8:11], s14 offen", "s_waitcnt vmcnt(0)", "ds_write_b128 v1, v[4:7]",
              "v_add_u32 v1, 4096, v1", "s_add_u32 s15, s15, 1", "s_cmp_lt_u32 s15, 15", f"s_cbranch_scc1 F{n}",
              "s_waitcnt lgkmcnt(0)", "s_barrier", f"v_and_b32 v{nv-1}, 63, v0"]
        s += init.replace("@", f"L{n}_").strip().split("\n")
        s += ["s_memtime s[16:17]", "s_memrealtime s[18:19]", "s_waitcnt lgkmcnt(0)", ".p2align 3", f"B{n}:"]
        s += body.replace("@", f"L{n}_").strip().split("\n")
        s += ["s_sub_u32 s12, s12, 1", "s_cmp_lg_u32 s12, 0", f"s_cbranch_scc1 B{n}",
              "s_waitcnt vmcnt(0) lgkmcnt(0)",
              "s_memtime s[24:25]", "s_memrealtime s[26:27]", "s_waitcnt lgkmcnt(0)",
              "v_mov_b32 v0, s16", "v_mov_b32 v1, s18", "v_mov_b32 v2, s24", "v_mov_b32 v3, s26",
              "s_lshl_b32 s14, s2, 4", "s_add_u32 s14, s14, s13", "s_lshl_b32 s14, s14, 4", "v_mov_b32 v4, s14",
              "s_mov_b64 exec, 1", "buffer_store_dwordx4 v[0:3], v4, s[4:7], 0 offen", "s_endpgm"]
        md.append(k)
    s.append('.section .rodata,"a"')
    for k in md:
        s += [".p2align 6", f".amdhsa_kernel {k}", f".amdhsa_next_free_vgpr {nv+na}", ".amdhsa_next_free_sgpr 96", f".amdhsa_accum_offset {nv}",
              ".amdhsa_kernarg_size 32", ".amdhsa_user_sgpr_count 2", ".amdhsa_user_sgpr_kernarg_segment_ptr 1", ".amdhsa_system_sgpr_workgroup_id_x 1", ".end_amdhsa_kernel"]
    s += [".amdgpu_metadata", "---", "amdhsa.version: [1, 2]", "amdhsa.kernels:"]
    for k in md:
        s += [f"  - .name: {k}", f"    .symbol: {k}.kd", "    .kernarg_segment_size: 32", "    .kernarg_segment_align: 8", "    .group_segment_fixed_size: 0",
              "    .private_segment_fixed_size: 0", "    .wavefront_size: 64", "    .sgpr_count: 96", f"    .vgpr_count: {nv+na}", "    .max_flat_workgroup_size: 1024",
              "    .args:", "      - {.name: kernargs, .size: 32, .offset: 0, .value_kind: by_value}"]
    s += ["...", ".end_amdgpu_metadata"]
    open(path, "w").write("\n".join(s) + "\n")
    open(path + ".names", "w").write("\n".join(kernels.keys()))
    r = subprocess.run(["clang", "-x", "assembler", "-target", "amdgcn-amd-amdhsa", "-mcpu=gfx950", path, "-o", path + ".co"], capture_output=True, text=True)
    assert r.returncode == 0, r.stderr

def run(path, configs, tiles_per_simd=26, lds=65536):
    import cdna_launch as cl
    hip = cl._hip
    r = subprocess.run(["clang", "-x", "assembler", "-target", "amdgcn-amd-amdhsa", "-mcpu=gfx950", path, "-o", path + ".co"], capture_output=True, text=True)
    assert r.returncode == 0, r.stderr
    names = open(path + ".names").read().split("\n")
    rng = np.random.default_rng(0)
    f = (rng.standard_normal(1 << 19) * 0.8).astype(np.float32)
    bf = (f.view(np.uint32) >> 16).astype(np.uint16)
    rnd = cl.DeviceBuffer.from_numpy(bf)
    tab = cl.DeviceBuffer.from_numpy(np.tile(bf, 8))
    out = cl.DeviceBuffer(1 << 20)
    assert (tab.ptr & 0xffffffff) + (8 << 20) < (1 << 32), "table crosses a 4 GiB boundary"
    mod = ctypes.c_void_p()
    cl._check(hip.hipModuleLoad(ctypes.byref(mod), (path + ".co").encode()))
    for n, name in enumerate(names):
        fn = ctypes.c_void_p()
        cl._check(hip.hipModuleGetFunction(ctypes.byref(fn), mod, f"k{n}".encode()))
        line = f"{name:26s}"
        for threads in configs:
            wps = threads // 256
            iters = max(1, round(tiles_per_simd / wps))
            ka = struct.pack("<QQIIQ", out.ptr, rnd.ptr, iters, 0, tab.ptr)
            for rep in range(3):
                cl._launch_function(fn, (256, 1, 1), (threads, 1, 1), ka, lds, None)
                cl._check(hip.hipDeviceSynchronize())
            o = out.to_numpy(np.uint32, (256, 16, 4))[:, : threads // 64].astype(np.int64)
            dc = (o[:, :, 2].max(1) - o[:, :, 0].min(1)).mean()
            dr = (o[:, :, 3].max(1) - o[:, :, 1].min(1)).mean()
            line += f" | t{threads}: {dc/(iters*wps):7.1f} cyc/it {dc/dr/10:.2f}GHz {dr/100*tiles_per_simd/(iters*wps):6.2f}us"
        print(line)

if __name__ == "__main__":
    run(sys.argv[1], [int(x) for x in sys.argv[2].split(",")], tiles_per_simd=int(sys.argv[3]) if len(sys.argv) > 3 else 26)
```

```python
import mb
from gen_d2 import init as init0, p2, idx
G, IX, AE, DEN, NUM, R, VA4, SA, SB, WC = 32, 48, 64, 72, 74, 84, 92, 66, 68, 70
def ld(P, j): return f"buffer_load_dword v{P+j}, v{IX+j}, s[40:43], 0 offen\n"
def pre(P, q):
    g, p = G + 4*q, P + 4*q
    return [f"v_pk_mul_f32 {p2(p)}, {p2(g+2)}, {p2(p)}\n", f"v_pk_mul_f32 {p2(R+2*q)}, {p2(g)}, {p2(g+2)}\n", f"v_pk_fma_f32 {p2(p)}, {p2(g)}, {p2(p+2)}, {p2(p)}\n",
            f"v_pk_add_f32 {p2(p+2)}, {p2(g)}, {p2(g+2)}\n"]
def acc(P, q):
    p = P + 4*q
    return f"v_pk_fma_f32 {p2(DEN)}, {p2(R+2*q)}, {p2(p+2)}, {p2(DEN)}\n v_pk_fma_f32 {p2(NUM)}, {p2(R+2*q)}, {p2(p)}, {p2(NUM)}\n"
g4 = lambda q: f"v[{G+4*q}:{G+4*q+3}]"
ma = lambda P, q: f"v_mfma_f32_4x4x4_16b_bf16 {g4(q)}, {p2(SA)}, {p2(P+4*q)}, v[{VA4}:{VA4+3}]\n"
mb_ = lambda P, q: f"v_mfma_f32_4x4x4_16b_bf16 {g4(q)}, {p2(SB)}, {p2(P+4*q+2)}, {g4(q)}\n"
me = lambda q, b: f"v_mfma_f32_4x4x4_16b_bf16 {g4(q)}, {p2(AE)}, {p2(WC)}, {g4(q)} cbsz:4 abid:{b+q}\n"
ex = lambda k: f"v_exp_f32 v{G+k}, v{G+k} clamp\n"
rc = lambda k: f"v_rcp_f32 v{R+k}, v{R+k}\n"
br = "s_sub_u32 s30, s30, 0\n s_cbranch_scc1 @x\n"
def tile_new(Pc, Pn, t, loads=True):
    s = "".join(ex(k) for k in range(8, 16))
    s += "".join(f"v_pk_fma_f32 {p2(G+2*k)}, {p2(G+2*k)}, s[20:21], 1.0 op_sel_hi:[1,1,0]\n" for k in range(8))
    for q in range(4): s += "".join(pre(Pc, q))
    s += ("s_waitcnt vmcnt(0)\n" if loads else "") + br
    b = 4*t
    s += ma(Pn,0)+rc(0)+ma(Pn,1)+rc(1)+mb_(Pn,0)+rc(2)+mb_(Pn,1)+rc(3)+me(0,b)+rc(4)+me(1,b)+rc(5)+ma(Pn,2)+rc(6)+ma(Pn,3)+rc(7)
    s += mb_(Pn,2)+ex(0)+mb_(Pn,3)+ex(1)+me(2,b)+ex(2)+me(3,b)+ex(3)
    if t == 0: s += f"ds_read_b64 {p2(AE)}, v115\n"
    s += "".join(ex(k) for k in range(4, 8)) + br
    s += "".join(acc(Pc, q) for q in range(4))
    if loads: s += "s_waitcnt lgkmcnt(0)\n" + "".join(ld(Pc, j) for j in range(16)) + idx()
    return s
def tile_old(Pc, Pn, t, loads=True):
    s = ""
    if loads: s += "s_waitcnt lgkmcnt(0)\n" + "".join(ld(Pn, j) for j in range(16)) + idx()
    s += "".join(ex(k) for k in range(16))
    s += "".join(f"v_pk_fma_f32 {p2(G+2*k)}, {p2(G+2*k)}, s[20:21], 1.0 op_sel_hi:[1,1,0]\n" for k in range(8))
    for q in range(4): s += "".join(pre(Pc, q))
    s += ("s_waitcnt vmcnt(0)\n" if loads else "") + br
    s += "".join(f"v_dot2_f32_bf16 v{G+k}, v{Pn+k}, s24, v{VA4}\n" for k in range(16))
    b = 4*t
    s += rc(0)+rc(1)+me(0,b)+rc(2)+me(1,b)+rc(3)+me(2,b)+rc(4)+me(3,b)
    if t == 0: s += f"ds_read_b64 {p2(AE)}, v115\n"
    s += rc(5)+rc(6)+rc(7) + br + "".join(acc(Pc, q) for q in range(4))
    return s
i0 = init0() + "s_mov_b32 s24, 0x3f80\n s_mov_b32 s30, 5\n v_and_b32 v66, 3, v119\n v_cmp_eq_u32 vcc, 0, v66\n v_mov_b32 v67, 0x3f80\n v_cndmask_b32 v66, 0, v67, vcc\n v_mov_b32 v67, 0\n v_mov_b32 v68, 0\n v_mov_b32 v69, v66\n" + "".join(f"v_mov_b32 v{VA4+k}, -4.0\n" for k in range(4))
def body(f, **kw): return f(0, 16, 0, **kw) + f(16, 0, 1, **kw) + "@x:\n"
K = {"old noload": (i0, body(tile_old, loads=False)), "new noload": (i0, body(tile_new, loads=False)), "old": (i0, body(tile_old)), "new": (i0, body(tile_new))}
mb.emit(K, "d7.s", nv=120, na=8)
```

```python
import sys, struct

NAME = "standalone__edge_featured_mpnn_gatedgcn__graph"
N, E, D = 12500, 800000, 64
NCH, CH = 250, 3200
NB, BN = 256, 49
CHB = CH * 12
WS_OFF = NCH * CHB
WS_WF = WS_OFF + NCH * 1024
WF_BYTES = 2 * 8192 + 512
WS_P = WS_WF + 17408
P_BYTES = (N + 1) * 256
assert WS_P % 256 == 0
f2u = lambda x: struct.unpack("<I", struct.pack("<f", x))[0]
NLOG2E = f2u(-1.4426950408889634)
CLAMP_LOG = 50
BIG = f2u(2.0 ** CLAMP_LOG)

OPT = dict(npre=12, k1ord=0, gfl='', exp_noload=False, exp_noidx=False, nbuf=2, wl=None, wy=0, spin1=0, spin2=0, xmap=True, warmpos=0, safe=False, stamp=False, k1store="sc0 sc1", k1load="nt", warm=False, prio=(112,64,24), pstore="sc0 sc1")
for a in sys.argv[1:]:
    if "=" in a:
        k, v = a.split("=", 1)
        OPT[k] = eval(v)

out = []
def A(s=""): out.append(s)
def L(lbl): out.append(lbl + ":")
def I(s):
    for ln in s.strip().split("\n"):
        out.append("    " + ln.strip())
def p2(r): return f"v[{r}:{r+1}]"
def v4(r): return f"v[{r}:{r+3}]"
def s2(r): return f"s[{r}:{r+1}]"
def s4(r): return f"s[{r}:{r+3}]"

def srd(d, lo, hi, nrec, stride=0, w3=0x20000):
    if lo != d:
        I(f"s_mov_b32 s{d}, s{lo}")
    I(f"s_and_b32 s{d+1}, s{hi}, 0xffff")
    if stride:
        I(f"s_or_b32 s{d+1}, s{d+1}, {stride << 16:#x}")
    I(f"s_mov_b32 s{d+2}, {nrec}")
    I(f"s_mov_b32 s{d+3}, {w3:#x}")

STAMP_V = None
def stamp(k, cyc=False):
    if not OPT["stamp"]:
        return
    I("s_memtime s[96:97]" if cyc else "s_memrealtime s[96:97]")
    I("s_waitcnt lgkmcnt(0)")
    I(f"v_writelane_b32 v{STAMP_V}, s96, {k}")
def stamp_flush(kern):
    if not OPT["stamp"]:
        return
    I("s_mov_b64 exec, -1")
    I("s_load_dwordx2 s[96:97], s[0:1], 88")
    I("s_waitcnt lgkmcnt(0)")
    I(f"s_add_u32 s96, s96, {(128 << 20) + kern * (2 << 20)}")
    I("s_addc_u32 s97, s97, 0")
    I("s_and_b32 s97, s97, 0xffff")
    I("s_mov_b32 s98, 0x200000")
    I("s_mov_b32 s99, 0x20000")
    I("v_mbcnt_lo_u32_b32 v1, -1, 0")
    I("v_mbcnt_hi_u32_b32 v1, -1, v1")
    I("v_lshlrev_b32 v1, 2, v1")
    I("s_lshl_b32 s100, s2, 4")
    I("s_add_u32 s100, s100, s101")
    I("s_lshl_b32 s100, s100, 6")
    I("v_add_u32 v1, s100, v1")
    I("s_mov_b64 exec, 0xffff")
    I(f"buffer_store_dword v{STAMP_V}, v1, s[96:99], 0 offen")
def stamp_init(v):
    global STAMP_V
    STAMP_V = v
    if not OPT["stamp"]:
        return
    I(f"v_lshrrev_b32 v{v}, 6, v0")
    I("s_nop 0")
    I(f"v_readfirstlane_b32 s101, v{v}")
    I(f"v_mov_b32 v{v}, 0")
    stamp(0)

def spin_start(x):
    if x:
        I("s_memrealtime s[92:93]")
        I("s_waitcnt lgkmcnt(0)")
def spin_end(x, tag):
    if x:
        I("s_waitcnt vmcnt(0)")
        L(f"SPIN{tag}")
        I("s_memrealtime s[94:95]")
        I("s_waitcnt lgkmcnt(0)")
        I("s_sub_u32 s94, s94, s92")
        I(f"s_cmp_lt_u32 s94, {x * 100}")
        I(f"s_cbranch_scc1 SPIN{tag}")

def wave_scan(v):
    for sh in (1, 2, 4, 8):
        I("s_nop 1")
        I(f"v_add_u32_dpp v{v}, v{v}, v{v} row_shr:{sh} row_mask:0xf bank_mask:0xf bound_ctrl:0")
    I("s_nop 1")
    I(f"v_add_u32_dpp v{v}, v{v}, v{v} row_bcast:15 row_mask:0xa bank_mask:0xf")
    I("s_nop 1")
    I(f"v_add_u32_dpp v{v}, v{v}, v{v} row_bcast:31 row_mask:0xc bank_mask:0xf")

K1_HIST = CHB
K1_OFFS = CHB + 1024
K1_PX = CHB + 2048
K1_PW = K1_PX + 3 * 4096
K1_PO = K1_PW + 16384
K1_LDS = K1_PO + 3 * 6144
K1_GRID = NCH + 2

CAP = 4352
CAPLIM = CAP - 128
L_MISC = 0
M_CNT1, M_CNT2, M_LMIN, M_LCNT, M_FLAG = 0, 256, 512, 768, 1024
L_S4 = 1280
L_E8 = L_S4 + CAP * 4
L_T = L_E8 + CAP * 8
T_ATAB = 0
T_UT = 16384
T_NUM = 32768
T_DEN = T_NUM + 66 * 256
T_END = T_DEN + 66 * 256
L_XN = L_T + T_END
L_WF = L_XN + 8192
K2_LDS = L_WF + 16384
assert T_DEN + 256 < 65536 and L_E8 < 65536 and K2_LDS <= 163840 and L_T % 16 == 0
assert NCH * 16 + BN * 3 <= CAPLIM
PADW = N * 256

hdr = open("cdna_kernels/" + NAME + ".s.ref").read().split("; Override launch")[0]
A(hdr.rstrip())
A(f"; @launch grid=({NB},1,1) block=(1024,1,1) lds={max(K1_LDS, K2_LDS)}")
A('.amdgcn_target "amdgcn-amd-amdhsa--gfx950"')
A(".text")

A(f".globl {NAME}_kernel")
A(".p2align 8")
A(f".type {NAME}_kernel,@function")
L(f"{NAME}_kernel")
I(f"s_cmp_ge_u32 s2, {NB}")
I("s_cbranch_scc1 K2_end")
spin_start(OPT["spin2"])
I(f"s_cmp_ge_u32 s2, {K1_GRID}")
I("s_cbranch_scc1 K1_end")
I(f"s_cmp_ge_u32 s2, {NCH}")
I("s_cbranch_scc1 K1_weights")
stamp_init(90)
I("v_lshrrev_b32 v1, 6, v0")
I("s_load_dwordx2 s[12:13], s[0:1], 24")
I("s_load_dwordx4 s[4:7], s[0:1], 8")
I("s_load_dwordx2 s[16:17], s[0:1], 88")
I("v_readfirstlane_b32 s28, v1")
I("s_nop 1")
I("s_cmp_ge_u32 s28, 13")
I("s_cbranch_scc1 K1_ptab")
I("v_lshlrev_b32 v1, 2, v0")
I("v_mov_b32 v2, 0")
I("v_mov_b32 v40, 1")
I("s_mul_i32 s3, s2, 12800")
I("v_lshl_add_u32 v3, v0, 4, s3")
I("v_lshlrev_b32 v4, 1, v3")
I("v_cmp_gt_u32 vcc, 256, v0")
I("s_and_saveexec_b64 s[30:31], vcc")
I(f"ds_write_b32 v1, v2 offset:{K1_HIST}")
I("s_mov_b64 exec, s[30:31]")
I("s_movk_i32 s34, 800")
I("v_cmp_gt_u32 s[32:33], s34, v0")
I("s_waitcnt lgkmcnt(0)")
srd(12, 12, 13, E * 4)
I("s_mov_b64 exec, s[32:33]")
I(f"buffer_load_dwordx4 v[8:11], v3, s[12:15], 0 offen {OPT['k1load']}")
srd(8, 6, 7, E * 4)
srd(4, 4, 5, E * 8)
stamp(1)
if OPT["k1ord"] != 1:
    I("s_barrier")
I(f"buffer_load_dwordx4 v[12:15], v3, s[8:11], 0 offen {OPT['k1load']}")
I(f"buffer_load_dwordx4 v[16:19], v4, s[4:7], 0 offen {OPT['k1load']}")
I(f"buffer_load_dwordx4 v[20:23], v4, s[4:7], 0 offen offset:16 {OPT['k1load']}")
if OPT["k1ord"] == 1:
    I("s_barrier")
srd(16, 16, 17, WS_OFF)
I("s_movk_i32 s35, 21400")
I("s_movk_i32 s36, -196")
I("s_waitcnt vmcnt(3)")
stamp(2)
for k in range(4):
    I(f"v_mul_u32_u24 v{24+k}, s35, v{8+k}")
    I(f"v_lshrrev_b32 v{24+k}, 20, v{24+k}")
    I(f"v_lshlrev_b32 v{8+k}, 2, v{8+k}")
    I(f"v_mad_i32_i24 v{8+k}, v{24+k}, s36, v{8+k}")
    I(f"v_lshlrev_b32 v{24+k}, 2, v{24+k}")
    I(f"ds_add_rtn_u32 v{28+k}, v{24+k}, v40 offset:{K1_HIST}")
I("s_mov_b64 exec, -1")
I("v_and_b32 v5, 63, v0")
I("v_lshlrev_b32 v5, 4, v5")
I("v_lshlrev_b32 v6, 4, v0")
I("s_waitcnt lgkmcnt(0)")
stamp(3)
I("s_barrier")
stamp(4)
I(f"ds_read_b128 v[32:35], v5 offset:{K1_HIST}")
I("s_waitcnt lgkmcnt(0)")
I("v_add_u32 v37, v32, v33")
I("v_add_u32 v38, v37, v34")
I("v_add_u32 v39, v38, v35")
I("v_mov_b32 v41, v39")
wave_scan(41)
I("v_sub_u32 v44, v41, v39")
I("v_add_u32 v45, v44, v32")
I("v_add_u32 v46, v44, v37")
I("v_add_u32 v47, v44, v38")
I(f"ds_write_b128 v5, v[44:47] offset:{K1_OFFS}")
I("s_mov_b64 exec, s[32:33]")
for k in range(4):
    I(f"ds_read_b32 v{24+k}, v{24+k} offset:{K1_OFFS}")
I("s_waitcnt lgkmcnt(0)")
for k in range(4):
    I(f"v_add_u32 v{24+k}, v{24+k}, v{28+k}")
    I(f"v_mul_u32_u24 v{24+k}, 12, v{24+k}")
stamp(5)
I("s_waitcnt vmcnt(2)")
stamp(6)
for k in range(4):
    I(f"v_lshl_or_b32 v{8+k}, v{12+k}, 8, v{8+k}")
    I(f"ds_write_b32 v{24+k}, v{8+k} offset:8")
I("s_waitcnt vmcnt(0)")
stamp(7)
for k in range(4):
    I(f"ds_write2_b32 v{24+k}, v{16+2*k}, v{17+2*k} offset0:0 offset1:1")
I(f"s_mul_i32 s3, s2, {CHB}")
I("s_add_u32 s37, s3, 12800")
I("s_add_u32 s38, s3, 25600")
I("s_waitcnt lgkmcnt(0)")
stamp(8)
I("s_barrier")
stamp(9)
I("ds_read_b128 v[8:11], v6")
I("ds_read_b128 v[12:15], v6 offset:12800")
I("ds_read_b128 v[16:19], v6 offset:25600")
I("s_waitcnt lgkmcnt(2)")
I(f"buffer_store_dwordx4 v[8:11], v6, s[16:19], s3 offen {OPT['k1store']}")
I("s_waitcnt lgkmcnt(1)")
I(f"buffer_store_dwordx4 v[12:15], v6, s[16:19], s37 offen {OPT['k1store']}")
I("s_waitcnt lgkmcnt(0)")
I(f"buffer_store_dwordx4 v[16:19], v6, s[16:19], s38 offen {OPT['k1store']}")
stamp(10)
if OPT["stamp"]:
    I("s_waitcnt vmcnt(0)")
stamp(11)
stamp_flush(0)
I("s_branch K1_end")

L("K1_ptab")
I("s_load_dwordx2 s[44:45], s[0:1], 0")
I("s_load_dwordx2 s[8:9], s[0:1], 40")
I("s_load_dwordx2 s[46:47], s[0:1], 64")
I("s_sub_u32 s28, s28, 13")
I("v_and_b32 v1, 63, v0")
I("s_mul_i32 s29, s2, 50")
I("s_mul_i32 s31, s28, 17")
I("s_add_u32 s30, s31, 17")
I("s_min_u32 s30, s30, 50")
I("s_add_u32 s30, s30, s29")
I("s_add_u32 s31, s31, s29")
I("v_lshrrev_b32 v2, 3, v1")
I("v_add_u32 v2, s31, v2")
I("v_lshlrev_b32 v2, 7, v2")
I("v_and_b32 v3, 7, v1")
I("v_lshrrev_b32 v4, 4, v1")
I("v_xor_b32 v3, v3, v4")
I("v_lshl_add_u32 v2, v3, 4, v2")
I("v_xor_b32 v3, 64, v2")
I("v_add_u32 v3, 1024, v3")
I("v_add_u32 v5, 2048, v2")
I("v_lshrrev_b32 v7, 2, v1")
I("v_lshlrev_b32 v7, 7, v7")
I("v_and_b32 v8, 3, v1")
I("v_lshl_add_u32 v7, v8, 4, v7")
I("v_add_u32 v8, 64, v7")
I("s_lshl_b32 s33, s28, 12")
I(f"s_add_u32 s33, s33, {K1_PX}")
I("s_lshl_b32 s32, s30, 7")
I("s_movk_i32 s35, 2048")
I("s_movk_i32 s36, 4096")
I("s_movk_i32 s37, 6144")
I("s_waitcnt lgkmcnt(0)")
srd(4, 44, 45, "s32")
srd(8, 8, 9, 8192)
srd(12, 46, 47, 8192)
I("s_mov_b32 m0, s33")
for v in (2, 3, 5):
    I("s_nop 0")
    I(f"buffer_load_dwordx4 v{v}, s[4:7], 0 offen lds")
    I("s_add_u32 m0, m0, 1024")
for t in range(3):
    if t < 2:
        I(f"s_cmp_lg_u32 s28, {t}")
        I(f"s_cbranch_scc1 K1_wd{t+1}")
    for p in range(t, 16, 3):
        half, j = p >> 2, p & 3
        I(f"s_mov_b32 m0, {K1_PW + 1024 * p}")
        I("s_nop 0")
        I(f"buffer_load_dwordx4 v{7 + (half & 1)}, {s4(8 if half < 2 else 12)}, {['0', 's35', 's36', 's37'][j]} offen lds")
    if t < 2:
        I("s_branch K1_pt1")
        L(f"K1_wd{t+1}")
L("K1_pt1")
I("s_barrier")
I("v_and_b32 v9, 31, v1")
I("v_lshrrev_b32 v10, 5, v1")
I("v_bfe_u32 v11, v9, 1, 3")
I("v_xor_b32 v11, v11, v10")
I("v_lshlrev_b32 v11, 4, v11")
I("v_lshl_add_u32 v11, v9, 7, v11")
for s_ in range(4):
    I(f"v_xor_b32 v{12+s_}, {32*s_}, v11")
    I(f"v_add_u32 v{12+s_}, s33, v{12+s_}")
I("v_bfe_u32 v16, v1, 2, 2")
I("v_lshl_add_u32 v16, v10, 3, v16")
I("v_lshlrev_b32 v16, 6, v16")
I("v_bfe_u32 v17, v1, 4, 1")
I("v_lshl_add_u32 v16, v17, 5, v16")
I("v_and_b32 v17, 3, v1")
I("v_lshl_add_u32 v16, v17, 3, v16")
I(f"v_add_u32 v16, {K1_PW}, v16")
I("s_mul_i32 s34, s28, 6144")
I(f"s_add_u32 s34, s34, {K1_PO}")
I("v_lshlrev_b32 v18, 10, v10")
I("v_lshl_add_u32 v18, v9, 2, v18")
I("v_add_u32 v18, s34, v18")
I("v_lshlrev_b32 v5, 4, v1")
I("v_add_u32 v3, s34, v5")
I("s_lshl_b32 s31, s31, 8")
I("v_add_u32 v2, s31, v5")
I(f"s_add_u32 s20, s16, {WS_OFF}")
I("s_addc_u32 s21, s17, 0")
I(f"s_add_u32 s16, s16, {WS_P}")
I("s_addc_u32 s17, s17, 0")
srd(20, 20, 21, NCH * 1024)
I("s_lshl_b32 s30, s30, 8")
srd(16, 16, 17, "s30")
I(f"s_mov_b32 s38, {NLOG2E:#x}")
I("s_mov_b32 s39, 0x7fff0000")
I("s_brev_b32 s40, 1")
XR, WB, WV, DB, DV, PT = 20, 36, 52, 68, 92, 108
I("s_waitcnt vmcnt(0)")
for s_ in range(4):
    I(f"ds_read_b128 {v4(XR+4*s_)}, v{12+s_}")
I("s_barrier")
def wreads(c):
    for base, off in ((WB, 0), (WV, 8192)):
        for s_ in range(4):
            for t in range(2):
                I(f"ds_read_b64_tr_b16 {p2(base+4*s_+2*t)}, v16 offset:{off + 4096*c + 1024*s_ + 256*t}")
        if base == WB:
            I("s_waitcnt lgkmcnt(4)")
def wmfma():
    I("s_waitcnt lgkmcnt(8)")
    for s_ in range(4):
        I(f"v_mfma_f32_32x32x16_bf16 v[{DB}:{DB+15}], {v4(XR+4*s_)}, {v4(WB+4*s_)}, " + ("0" if s_ == 0 else f"v[{DB}:{DB+15}]"))
    I("s_waitcnt lgkmcnt(0)")
    for s_ in range(4):
        I(f"v_mfma_f32_32x32x16_bf16 v[{DV}:{DV+15}], {v4(XR+4*s_)}, {v4(WV+4*s_)}, " + ("0" if s_ == 0 else f"v[{DV}:{DV+15}]"))
def ppack(c):
    rs = range(9)
    for r in rs:
        I(f"v_mul_f32 v{DB+r}, s38, v{DB+r}")
    for r in rs:
        I(f"v_cvt_pk_bf16_f32 v{DB+r}, v{DB+r}, 0")
    for r in rs:
        t = PT + r
        I(f"v_and_b32 v{t}, 0x7fffffff, v{DV+r}")
        I(f"v_add_u32 v{t}, 0x8000, v{t}")
        I(f"v_sub_u32_e64 v{t}, v{t}, v{DB+r} clamp")
        I(f"v_and_or_b32 v{t}, v{t}, s39, v{DB+r}")
        I(f"v_bfi_b32 v{t}, s40, v{DV+r}, v{t}")
        I(f"ds_write_b32 v18, v{t} offset:{(8 * (r >> 2) + (r & 3)) * 256 + 128 * c}")
wreads(0)
I("s_cmp_lg_u32 s28, 2")
I("s_cbranch_scc1 K1_ptx")
I(f"ds_read_b128 v[{DB}:{DB+3}], v5 offset:{K1_HIST}")
I("s_waitcnt lgkmcnt(0)")
I(f"v_add_u32 v{DB+5}, v{DB}, v{DB+1}")
I(f"v_add_u32 v{DB+6}, v{DB+5}, v{DB+2}")
I(f"v_add_u32 v{DB+7}, v{DB+6}, v{DB+3}")
I(f"v_mov_b32 v{DB+8}, v{DB+7}")
wave_scan(DB + 8)
I(f"v_sub_u32 v{PT}, v{DB+8}, v{DB+7}")
I(f"v_add_u32 v{PT+1}, v{PT}, v{DB}")
I(f"v_add_u32 v{PT+2}, v{PT}, v{DB+5}")
I(f"v_add_u32 v{PT+3}, v{PT}, v{DB+6}")
for k in range(4):
    I(f"v_lshl_or_b32 v{PT+k}, v{DB+k}, 16, v{PT+k}")
I("s_lshl_b32 s3, s2, 10")
I("v_add_u32 v5, s3, v5")
I(f"buffer_store_dwordx4 {v4(PT)}, v5, s[20:23], 0 offen {OPT['k1store']}")
L("K1_ptx")
wmfma()
wreads(1)
I("s_nop 3")
ppack(0)
wmfma()
I("s_nop 7")
ppack(1)
for j in range(5):
    I(f"ds_read_b128 {v4(XR+4*j)}, v3 offset:{1024*j}")
for j in range(5):
    I(f"s_waitcnt lgkmcnt({4-j})")
    I(f"buffer_store_dwordx4 {v4(XR+4*j)}, v2, s[16:19], 0 offen {OPT['pstore']}")
    if j < 4:
        I("v_add_u32 v2, 1024, v2")
I("s_barrier")
I("s_branch K1_end")

L("K1_weights")
I(f"s_sub_u32 s3, s2, {NCH}")
I("s_cmp_eq_u32 s3, 0")
I("s_cselect_b32 s24, 32, 56")
I("s_load_dwordx2 s[4:5], s[0:1], s24")
I("s_load_dwordx2 s[8:9], s[0:1], 48")
I("s_load_dwordx2 s[16:17], s[0:1], 88")
I("v_and_b32 v1, 31, v0")
I("v_bfe_u32 v2, v0, 5, 1")
I("v_bfe_u32 v3, v0, 6, 2")
I("v_bfe_u32 v4, v0, 8, 1")
I("v_lshl_add_u32 v5, v3, 1, v2")
I("v_lshlrev_b32 v5, 10, v5")
I("v_lshl_add_u32 v6, v4, 5, v1")
I("v_lshl_add_u32 v5, v6, 1, v5")
I("s_waitcnt lgkmcnt(0)")
srd(4, 4, 5, 8192)
srd(8, 8, 9, 512)
I(f"s_add_u32 s16, s16, {WS_WF}")
I("s_addc_u32 s17, s17, 0")
srd(16, 16, 17, WS_P - WS_WF + P_BYTES)
I("s_movk_i32 s34, 512")
I("v_cmp_gt_u32 vcc, s34, v0")
I("s_and_saveexec_b64 s[30:31], vcc")
I("s_cbranch_execz K1_wc")
for i in range(8):
    I(f"buffer_load_ushort v{8+i}, v5, s[4:7], 0 offen offset:{128*i}")
I("s_lshl_b32 s26, s3, 13")
I("v_lshl_add_u32 v7, v0, 4, s26")
I("s_waitcnt vmcnt(0)")
for i in range(4):
    I(f"v_lshl_or_b32 v{16+i}, v{9+2*i}, 16, v{8+2*i}")
I("buffer_store_dwordx4 v[16:19], v7, s[16:19], 0 offen sc0 sc1")
I("s_branch K1_end")
L("K1_wc")
I("s_mov_b64 exec, s[30:31]")
I("s_cmp_lg_u32 s3, 0")
I("s_cbranch_scc1 K1_end")
I("s_movk_i32 s34, 576")
I("v_cmp_gt_u32 vcc, s34, v0")
I("s_and_saveexec_b64 s[30:31], vcc")
I("s_cbranch_execz K1_end")
I("v_and_b32 v6, 63, v0")
I("v_lshlrev_b32 v7, 1, v6")
for i in range(4):
    I(f"buffer_load_ushort v{8+i}, v7, s[8:11], 0 offen offset:{128*i}")
I("v_lshlrev_b32 v7, 3, v6")
I("v_add_u32 v7, 16384, v7")
I("v_lshlrev_b32 v12, 2, v6")
I(f"v_add_u32 v12, {WS_P - WS_WF + N * 256}, v12")
I("v_mov_b32 v13, 0x7e00")
I("buffer_store_dword v13, v12, s[16:19], 0 offen sc0 sc1")
I(f"s_mov_b32 s25, {NLOG2E:#x}")
I("s_waitcnt vmcnt(0)")
for i in range(4):
    I(f"v_lshlrev_b32 v{8+i}, 16, v{8+i}")
    I(f"v_mul_f32 v{8+i}, s25, v{8+i}")
I("v_cvt_pk_bf16_f32 v16, v8, v9")
I("v_cvt_pk_bf16_f32 v17, v10, v11")
I("buffer_store_dwordx2 v[16:17], v7, s[16:19], 0 offen sc0 sc1")
L("K1_end")
I("s_mov_b64 exec, -1")
I("s_load_dwordx2 s[4:5], s[0:1], 80")
I("s_waitcnt vmcnt(0) lgkmcnt(0)")
I("s_barrier")
I("v_cmp_eq_u32 vcc, 0, v0")
I("s_and_saveexec_b64 s[30:31], vcc")
I("s_cbranch_execz F_wait")
srd(4, 4, 5, 256)
I("v_mov_b32 v1, 0")
I("v_mov_b32 v2, 1")
I(f"s_cmp_ge_u32 s2, {K1_GRID}")
I("s_cbranch_scc1 F_poll0")
I("buffer_atomic_add v2, v1, s[4:7], 0 offen sc1")
L("F_poll0")
I("s_mov_b32 s8, 0")
L("F_poll")
I("buffer_load_dword v2, v1, s[4:7], 0 offen sc0 sc1")
I("s_add_u32 s8, s8, 1")
I("s_waitcnt vmcnt(0)")
I("v_readfirstlane_b32 s9, v2")
I("s_cmp_gt_u32 s8, 100000")
I("s_cbranch_scc1 F_got")
I("s_sleep 2")
I(f"s_cmp_lt_u32 s9, {K1_GRID}")
I("s_cbranch_scc1 F_poll")
L("F_got")
I("buffer_inv sc1")
I("s_waitcnt vmcnt(0)")
L("F_wait")
I("s_mov_b64 exec, -1")
I("s_barrier")

sP, sXN, sOFF, sREC, sWF, sOUT = 4, 8, 12, 16, 20, 24
sW, sCONS, sT, sR = 28, 29, 30, 31
sBIG, sTMP = 32, 34
sSOF = 36
sM1, sM2 = 40, 48
sANY16, sANY32 = 56, 58
sNS, sMORE, sFIRST, sC10 = 60, 61, 62, 63
sA, sB, sC, sD = 64, 65, 66, 67
sMF, sML = 68, 70
sEND, sEF, sCF, sFA, sLF = 72, 73, 74, 75, 76
sEL, sCL, sNN, sLL = 77, 78, 79, 80
sLD = 81
sPM = 82
sWM = 84
NS_ = 88
PA, PB, G, R, IX = 0, 16, 32, 48, 56
AE, WC, VAN, DEN, NUM = 72, 76, 78, 80, 82
PC, VA4, SELA, SELB = 96, 112, 116, 74
VLANE4 = 118
VAA = 119
PI, PE, LANET, ENDV, T0, T1, T2, TID, LANE = 84, 85, 86, 87, 88, 89, 90, 91, 92
CB = 93
OFFR = 56
OFFV = 95
AXR, AFR, ADD = 32, 96, 16
RB = [32, 36, 40, 44, 96, 100, 104, 108]
NV = 120
aTOT = 0
NA = 8

if OPT["xmap"]:
    I("s_and_b32 s3, s2, 7")
    I("s_lshr_b32 s2, s2, 3")
    I("s_lshl_b32 s3, s3, 5")
    I("s_or_b32 s2, s2, s3")
I(f"s_load_dwordx2 {s2(sREC)}, s[0:1], 88")
I(f"s_load_dwordx2 {s2(sXN)}, s[0:1], 0")
I(f"s_load_dwordx2 {s2(sOUT)}, s[0:1], 72")
stamp_init(94)
I(f"v_mov_b32 v{TID}, v0")
I(f"v_and_b32 v{LANE}, 63, v0")
I("v_lshrrev_b32 v1, 6, v0")
I("v_lshrrev_b32 v3, 4, v0")
I(f"v_readfirstlane_b32 s{sW}, v1")
def off_addr():
    I("v_and_b32 v5, 3, v0")
    I("v_lshl_add_u32 v4, v3, 2, v5")
    I("s_lshl_b32 s3, s2, 2")
    I("v_lshl_add_u32 v4, v4, 10, s3")
off_addr()
I(f"s_mov_b32 s{sA}, {4*CHB}")
I(f"v_mul_lo_u32 v{CB}, v3, s{sA}")
I(f"s_mul_i32 s{sB}, s2, {BN}")
I(f"s_add_u32 s{sC}, s{sB}, {BN}")
I(f"s_min_u32 s{sC}, s{sC}, {N}")
I(f"s_lshl_b32 s{sC}, s{sC}, 7")
I(f"v_lshrrev_b32 v6, 3, v0")
I("v_bfe_u32 v7, v0, 4, 3")
I("v_and_b32 v8, 7, v0")
I("v_xor_b32 v7, v7, v8")
I(f"v_add_u32 v6, s{sB}, v6")
I("v_lshlrev_b32 v6, 7, v6")
I("v_lshl_add_u32 v6, v7, 4, v6")
I(f"s_lshl_b32 s{sD}, s{sW}, 10")
I(f"s_add_u32 m0, s{sD}, {L_XN}")
I("s_waitcnt lgkmcnt(0)")
I(f"s_add_u32 s{sOFF}, s{sREC}, {WS_OFF}")
I(f"s_addc_u32 s{sOFF+1}, s{sREC+1}, 0")
srd(sOFF, sOFF, sOFF + 1, NCH * 1024)
I(f"buffer_load_dword v{OFFV}, v4, {s4(sOFF)}, 0 offen")
srd(sXN, sXN, sXN + 1, f"s{sC}")
I(f"s_add_u32 s{sWF}, s{sREC}, {WS_WF}")
I(f"s_addc_u32 s{sWF+1}, s{sREC+1}, 0")
srd(sWF, sWF, sWF + 1, WF_BYTES)
I(f"s_cmp_ge_u32 s{sW}, 8")
I("s_cbranch_scc1 K2_nox")
I(f"buffer_load_dwordx4 v6, {s4(sXN)}, 0 offen lds")
I("s_branch K2_nof")
L("K2_nox")
I(f"s_sub_u32 s{sD}, s{sW}, 8")
I(f"s_lshl_b32 s{sD}, s{sD}, 11")
I(f"v_lshl_add_u32 v6, v{LANE}, 4, s{sD}")
I(f"s_add_u32 m0, s{sD}, {L_WF}")
I("s_nop 0")
I(f"buffer_load_dwordx4 v6, {s4(sWF)}, 0 offen lds")
I(f"buffer_load_dwordx4 v6, {s4(sWF)}, 0 offen offset:1024 lds")
L("K2_nof")
I(f"v_lshlrev_b32 v7, 3, v{LANE}")
I("v_add_u32 v7, 16384, v7")
I(f"buffer_load_dwordx2 {p2(WC)}, v7, {s4(sWF)}, 0 offen")
I(f"s_add_u32 s{sP}, s{sREC}, {WS_P}")
I(f"s_addc_u32 s{sP+1}, s{sREC+1}, 0")
srd(sREC, sREC, sREC + 1, WS_OFF)
srd(sOUT, sOUT, sOUT + 1, f"s{sC}")
for i in range(1, 4):
    I(f"s_mov_b32 s{sSOF+i}, {i*CHB}")
I(f"s_mov_b32 s{sBIG}, {BIG:#x}")
I(f"s_mov_b32 s{sBIG+1}, {BIG:#x}")
I(f"s_movk_i32 s{sC10}, 0x3f80")
I(f"s_mov_b32 s{sCONS}, 0")
I(f"s_mov_b32 s{sFIRST}, 1")
I(f"v_lshlrev_b32 v{LANET}, 2, v{LANE}")
I(f"v_add_u32 v{LANET}, {L_T}, v{LANET}")

WARMV, WARMA = 119, 118
def warm_init():
    I(f"s_mov_b32 s{sWM}, s{sP}")
    I(f"s_and_b32 s{sWM+1}, s{sP+1}, 0xffff")
    I(f"s_mov_b32 s{sWM+2}, {P_BYTES}")
    I(f"s_mov_b32 s{sWM+3}, 0x20000")
    I(f"s_and_b32 s{sA}, s2, 31")
    I(f"s_mul_i32 s{sA}, s{sA}, 784")
    I(f"s_add_u32 s{sA}, s{sA}, s{sW}")
    I(f"v_lshl_add_u32 v{WARMA}, v{LANE}, 4, s{sA}")
    I(f"v_lshlrev_b32 v{WARMA}, 7, v{WARMA}")
def warm(k):
    lo = sum(OPT["wl"][:k]); n = OPT["wl"][k]
    if n == 0:
        return 0
    m = ((1 << n) - 1) << lo
    I(f"s_mov_b32 exec_lo, {m & 0xffffffff:#x}")
    I(f"s_mov_b32 exec_hi, {m >> 32:#x}")
    I(f"buffer_load_dword v{WARMV}, v{WARMA}, {s4(sWM)}, 0 offen")
    I("s_mov_b64 exec, -1")
    return 1
def lds_init():
    for k in range(4):
        I(f"v_mov_b32 v{16+k}, 0")
    I(f"v_lshlrev_b32 v20, 4, v{TID}")
    I(f"v_add_u32 v21, {L_T + T_NUM}, v20")
    I(f"s_movk_i32 s{sA}, 800")
    I(f"v_cmp_gt_u32 vcc, s{sA}, v{TID}")
    I(f"s_and_saveexec_b64 {s2(sTMP)}, vcc")
    I(f"ds_write_b128 v21, v[16:19]")
    I(f"ds_write_b128 v21, v[16:19] offset:{T_DEN - T_NUM}")
    I(f"s_movk_i32 s{sA}, 320")
    I(f"v_cmp_gt_u32 vcc, s{sA}, v{TID}")
    I(f"s_and_b64 exec, exec, vcc")
    I(f"v_lshrrev_b32 v22, 6, v{TID}")
    I("v_cmp_eq_u32 vcc, 2, v22")
    I("v_mov_b32 v23, 0xffff")
    I(f"v_lshlrev_b32 v20, 2, v{TID}")
    I("v_cndmask_b32 v22, 0, v23, vcc")
    I(f"ds_write_b32 v20, v22 offset:{L_MISC}")
    I(f"s_mov_b64 exec, {s2(sTMP)}")

lds_init()
stamp(1)
I(f"s_cmp_lt_u32 s{sW}, 8")
I("s_cbranch_scc1 K2_w2")
I("s_waitcnt vmcnt(3)")
I("s_branch K2_recs")
L("K2_w2")
I("s_waitcnt vmcnt(2)")
L("K2_recs")
stamp(2)
I(f"v_and_b32 v{T1}, 15, v{LANE}")
I(f"v_add_u32 v{T1}, s{sCONS}, v{T1}")
I(f"v_add_u32 v{T2}, 16, v{T1}")
I(f"v_add_u32 v{T0}, 32, v{T1}")
I(f"s_mov_b64 {s2(sANY16)}, 0")
I(f"s_mov_b64 {s2(sANY32)}, 0")
for i in range(4):
    I(f"v_mov_b32_dpp v{OFFR+i}, v{OFFV} quad_perm:[{i},{i},{i},{i}] row_mask:0xf bank_mask:0xf")
for i in range(4):
    so = "0" if i == 0 else f"s{sSOF+i}"
    I(f"v_lshrrev_b32 v{PI}, 16, v{OFFR+i}")
    I(f"v_and_b32 v{OFFR+i}, 0xffff, v{OFFR+i}")
    I(f"v_cmp_lt_u32 {s2(sM2+2*i)}, v{T2}, v{PI}")
    I(f"v_add_u32 v{OFFR+i}, v{OFFR+i}, v{T1}")
    I(f"v_cmp_lt_u32 {s2(sM1+2*i)}, v{T1}, v{PI}")
    I(f"v_mad_u32_u24 v{OFFR+i}, v{OFFR+i}, 12, v{CB}")
    I(f"v_cmp_lt_u32 vcc, v{T0}, v{PI}")
    I(f"s_or_b64 {s2(sANY16)}, {s2(sANY16)}, {s2(sM2+2*i)}")
    I(f"s_mov_b64 exec, {s2(sM2+2*i)}")
    I(f"s_cbranch_execz K2_nl{i}")
    I(f"buffer_load_dwordx3 v[{RB[4+i]}:{RB[4+i]+2}], v{OFFR+i}, {s4(sREC)}, {so} offen offset:192")
    L(f"K2_nl{i}")
    I("s_mov_b64 exec, -1")
    I(f"s_or_b64 {s2(sANY32)}, {s2(sANY32)}, vcc")
for i in range(4):
    so = "0" if i == 0 else f"s{sSOF+i}"
    I(f"s_mov_b64 exec, {s2(sM1+2*i)}")
    I(f"buffer_load_dwordx3 v[{RB[i]}:{RB[i]+2}], v{OFFR+i}, {s4(sREC)}, {so} offen")
I("s_mov_b64 exec, -1")
NWB = 0
I("s_waitcnt lgkmcnt(0)")
I("s_barrier")
if OPT["safe"]:
    srd(sP, sP, sP + 1, P_BYTES)
    I(f"v_lshlrev_b32 v{VLANE4}, 2, v{LANE}")
else:
    srd(sP, sP, sP + 1, P_BYTES, stride=4, w3=0x800000)
I(f"s_cmp_lg_u64 {s2(sANY16)}, 0")
I(f"s_cselect_b32 s{sA}, 1, 0")
I(f"s_cmp_lg_u64 {s2(sANY32)}, 0")
I(f"s_cselect_b32 s{sB}, 2, 0")
I(f"s_or_b32 s{sA}, s{sA}, s{sB}")
I(f"v_mov_b32 v{T1}, s{sA}")
I(f"v_mov_b32 v{T2}, {L_MISC + M_FLAG}")
I("s_mov_b64 exec, 1")
I(f"ds_or_b32 v{T2}, v{T1}")
I("s_mov_b64 exec, -1")
stamp(3)
ND = 48
I(f"v_mov_b32 v{T2}, 1")
for k in range(8):
    m = (sM1 if k < 4 else sM2) + 2 * (k % 4)
    if k < 4:
        I(f"s_waitcnt vmcnt({3 - k + NWB})")
    else:
        I(f"s_cmp_eq_u64 {s2(m)}, 0")
        I(f"s_cbranch_scc1 K2_nh{k}")
    I(f"v_and_b32 v{ND+k}, 0xff, v{RB[k]+2}")
    I(f"s_mov_b64 exec, {s2(m)}")
    I(f"ds_add_rtn_u32 v{RB[k]+3}, v{ND+k}, v{T2} offset:{L_MISC + (M_CNT1 if k < 4 else M_CNT2)}")
    I("s_mov_b64 exec, -1")
    I(f"v_and_b32 v{RB[k]+2}, 0xffffff00, v{RB[k]+2}")
    if k >= 4:
        L(f"K2_nh{k}")
I(f"v_lshlrev_b32 v{T1}, 2, v{LANE}")
I(f"v_mov_b32 v{T0}, 0")
I("s_waitcnt lgkmcnt(0)")
stamp(5)
I("s_barrier")
stamp(6)
if OPT["wl"]:
    warm(2)
if OPT["wy"]:
    nw = OPT["wy"]
    I(f"s_cmp_lt_u32 s{sW}, {16 - nw}")
    I("s_cbranch_scc1 K2_wy")
    I(f"s_mov_b32 s{sWM}, s{sP}")
    I(f"s_and_b32 s{sWM+1}, s{sP+1}, 0xffff")
    I(f"s_mov_b32 s{sWM+2}, {P_BYTES}")
    I(f"s_mov_b32 s{sWM+3}, 0x20000")
    I(f"s_and_b32 s{sA}, s2, 31")
    I(f"s_mul_i32 s{sA}, s{sA}, 784")
    I(f"s_sub_u32 s{sD}, s{sW}, {16 - nw}")
    I(f"s_mul_i32 s{sD}, s{sD}, {784 // nw}")
    I(f"s_add_u32 s{sA}, s{sA}, s{sD}")
    I(f"v_add_lshl_u32 v{WARMA}, v{LANE}, s{sA}, 7")
    I(f"s_mov_b32 exec_hi, 0x1ffff")
    for j in range(16 // nw):
        I(f"buffer_load_dword v{WARMV}, v{WARMA}, {s4(sWM)}, 0 offen")
        I(f"v_add_u32 v{WARMA}, {49 * 128}, v{WARMA}")
    I("s_mov_b64 exec, -1")
    L("K2_wy")
C1, C2, FL, TOT, PP, BS1, BS2, PW, PZ, PA1, PA2 = 0, 1, 2, 3, 4, 5, 6, 7, 112, 114, 115
I(f"ds_read2st64_b32 v[{C1}:{C2}], v{T1} offset0:0 offset1:1")
I(f"ds_read_b32 v{FL}, v{T0} offset:{L_MISC + M_FLAG}")
I(f"s_mov_b32 s{sR}, 32")
I(f"v_mov_b32 v{PW}, {PADW:#x}")
I(f"v_mov_b32 v{PZ}, 0")
I(f"v_mov_b32 v{PZ+1}, 0")
I("s_waitcnt lgkmcnt(0)")
I(f"v_readfirstlane_b32 s{sMORE}, v{FL}")
L("K2_scan")
I(f"v_add_u32 v{TOT}, v{C1}, v{C2}")
I(f"v_add_u32 v{PP}, 3, v{TOT}")
I(f"v_and_b32 v{PP}, -4, v{PP}")
I(f"v_mov_b32 v{ENDV}, v{PP}")
wave_scan(ENDV)
I("s_nop 0")
I(f"v_readlane_b32 s{sNS}, v{ENDV}, 63")
I(f"v_sub_u32 v{BS1}, v{ENDV}, v{PP}")
I(f"v_add_u32 v{BS2}, v{BS1}, v{C1}")
I(f"s_cmp_gt_u32 s{sNS}, {CAPLIM}")
I("s_cbranch_scc1 K2_shrink")
for k in range(4, 8):
    I(f"s_cmp_eq_u64 {s2(sM2+2*(k-4))}, 0")
    I(f"s_cbranch_scc1 K2_nb{k}")
    I(f"ds_bpermute_b32 v{ND+k}, v{ND+k}, v{BS2}")
    L(f"K2_nb{k}")
for k in range(4):
    I(f"ds_bpermute_b32 v{ND+k}, v{ND+k}, v{BS1}")
I(f"s_lshr_b32 s{sA}, s{sR}, 4")
I(f"s_and_b32 s{sMORE}, s{sMORE}, s{sA}")
I(f"s_add_u32 s{sA}, s{sNS}, 15")
I(f"s_lshr_b32 s{sA}, s{sA}, 4")
I(f"s_add_u32 s{sT}, s{sA}, 15")
I(f"s_sub_u32 s{sT}, s{sT}, s{sW}")
I(f"s_lshr_b32 s{sT}, s{sT}, 4")
I(f"s_lshr_b32 s{sB}, s{sA}, 4")
I(f"s_mul_i32 s{sB}, s{sB}, s{sW}")
I(f"s_and_b32 s{sA}, s{sA}, 15")
I(f"s_min_u32 s{sA}, s{sA}, s{sW}")
I(f"s_add_u32 s{sB}, s{sB}, s{sA}")
I(f"s_lshl_b32 s{sB}, s{sB}, 4")
I(f"s_lshl_b32 s{sEND}, s{sT}, 4")
I(f"s_add_u32 s{sEND}, s{sEND}, s{sB}")
I(f"s_mov_b64 {s2(sPM)}, 0")
I(f"s_cmp_gt_u32 s{sW}, 4")
I("s_cbranch_scc1 K2_nopad")
I(f"v_add_u32 v{TOT}, s{sW}, v{TOT}")
I(f"v_cmp_lt_u32 {s2(sPM)}, v{TOT}, v{PP}")
I(f"v_add_lshl_u32 v{PA1}, v{BS1}, v{TOT}, 2")
I(f"s_cmp_lt_u32 s{sW}, 3")
I("s_cbranch_scc1 K2_pad")
I(f"s_lshl_b32 s{sA}, s{sW}, 6")
I(f"s_add_u32 s{sA}, s{sA}, s{sNS}")
I(f"s_sub_u32 s{sA}, s{sA}, 192")
I(f"v_add_lshl_u32 v{PA1}, v{LANE}, s{sA}, 2")
I(f"s_mov_b64 {s2(sPM)}, -1")
L("K2_pad")
I(f"v_lshlrev_b32 v{PA2}, 1, v{PA1}")
I(f"s_mov_b64 exec, {s2(sPM)}")
I(f"ds_write_b32 v{PA1}, v{PW} offset:{L_S4}")
I("s_mov_b64 exec, -1")
I("s_waitcnt lgkmcnt(1)")
I("s_branch K2_sc4")
L("K2_nopad")
I("s_waitcnt lgkmcnt(0)")
L("K2_sc4")
for k in range(8):
    m = (sM1 if k < 4 else sM2) + 2 * (k % 4)
    if k >= 4:
        I(f"s_cmp_eq_u64 {s2(m)}, 0")
        I(f"s_cbranch_scc1 K2_ns{k}")
    I(f"v_add_lshl_u32 v{ND+k}, v{ND+k}, v{RB[k]+3}, 2")
    I(f"s_mov_b64 exec, {s2(m)}")
    I(f"ds_write_b32 v{ND+k}, v{RB[k]+2} offset:{L_S4}")
    I("s_mov_b64 exec, -1")
    I(f"v_lshlrev_b32 v{RB[k]+3}, 1, v{ND+k}")
    if k >= 4:
        L(f"K2_ns{k}")
I(f"v_cmp_lt_u32 {s2(sMF)}, 0, v{PP}")
I(f"v_cmp_lt_u32 vcc, s{sB}, v{ENDV}")
I(f"s_mov_b32 s{sA}, 0x7fffffff")
I(f"v_writelane_b32 v{ENDV}, s{sA}, {BN}")
I(f"s_and_b64 {s2(sMF)}, {s2(sMF)}, vcc")
I(f"s_bitset1_b64 {s2(sMF)}, {BN}")
I(f"s_ff1_i32_b64 s{sC}, {s2(sMF)}")
I(f"s_bitset0_b64 {s2(sMF)}, s{sC}")
I(f"v_readlane_b32 s{sEF}, v{ENDV}, s{sC}")
I(f"s_ff1_i32_b64 s{sNN}, {s2(sMF)}")
I(f"s_mov_b64 {s2(sML)}, {s2(sMF)}")
I(f"s_bitset0_b64 {s2(sML)}, s{sNN}")
I(f"s_lshl_b32 s{sA}, s{sC}, 8")
I(f"v_add_u32 v{VAA}, s{sA}, v{LANET}")
I(f"s_lshl_b32 s{sA}, s{sNN}, 8")
I(f"v_add_u32 v{VAN}, s{sA}, v{LANET}")
I(f"s_cmp_ge_u32 s{sEF}, s{sEND}")
I(f"s_cselect_b32 s{sLF}, 1, 0")
I(f"s_min_u32 s{sEF}, s{sEF}, s{sEND}")
I(f"s_mov_b32 s{sLL}, s{sLF}")
I(f"s_mov_b32 s{sEL}, s{sEF}")
I(f"s_sub_u32 s{sCL}, s{sEF}, s{sB}")
I(f"s_sub_u32 s{sCF}, s{sCL}, 1")
I(f"s_add_u32 s{sFA}, s{sW}, 50")
I(f"s_lshl_b32 s{sFA}, s{sFA}, 8")
I(f"s_lshl_b32 s{sA}, s{sB}, 2")
I(f"v_mov_b32 v{PI}, s{sA}")
I(f"v_and_b32 v{PE}, 15, v{LANE}")
I(f"v_add_lshl_u32 v{PE}, v{PE}, s{sB}, 3")
I(f"v_and_b32 v{T2}, 3, v{LANE}")
for r, want in ((SELA, 0), (SELA + 1, 1), (SELB, 2), (SELB + 1, 3)):
    I(f"v_cmp_eq_u32 vcc, {want}, v{T2}")
    I(f"v_mov_b32 v{r}, 0x3f80")
    I("s_nop 0")
    I(f"v_cndmask_b32 v{r}, 0, v{r}, vcc")
I(f"v_mov_b64 {p2(DEN)}, 0")
I(f"v_mov_b64 {p2(NUM)}, 0")
I(f"s_lshl_b32 s{sA}, s{sC}, 2")
I(f"v_mov_b32 v{T0}, s{sA}")
I(f"v_mov_b32 v{T1}, s{sW}")
I(f"v_mov_b32 v{T2}, 1")
I(f"s_cmp_eq_u32 s{sT}, 0")
I("s_cselect_b64 exec, 0, 1")
I(f"ds_min_u32 v{T0}, v{T1} offset:{L_MISC + M_LMIN}")
I(f"ds_add_u32 v{T0}, v{T2} offset:{L_MISC + M_LCNT}")
I("s_mov_b64 exec, -1")
I("s_waitcnt lgkmcnt(0)")
stamp(7)
I("s_barrier")
stamp(8)

NBUF = OPT["nbuf"]
BUFS = [PA, PB, PC][:NBUF]
def idx_reads(t):
    return [f"ds_read_b128 {v4(IX+4*j)}, v{PI} offset:{L_S4 + 64*t + 16*j}" for j in range(4)]
def loads(P):
    if OPT["safe"]:
        return sum(([f"v_add_u32 v{IX+j}, v{IX+j}, v{VLANE4}", f"buffer_load_dword v{P+j}, v{IX+j}, {s4(sP)}, 0 offen"] for j in range(16)), [])
    return [f"buffer_load_dword v{P+j}, v{IX+j}, {s4(sP)}, 0 offen {OPT['gfl']}" for j in range(16)]
g4 = lambda q: v4(G + 4 * q)
ma = lambda P, q: f"v_mfma_f32_4x4x4_16b_bf16 {g4(q)}, {p2(SELA)}, {p2(P+4*q)}, {v4(VA4)}"
mb = lambda P, q: f"v_mfma_f32_4x4x4_16b_bf16 {g4(q)}, {p2(SELB)}, {p2(P+4*q+2)}, {g4(q)}"
me = lambda q: f"v_mfma_f32_4x4x4_16b_bf16 {g4(q)}, {p2(AE)}, {p2(WC)}, {g4(q)} cbsz:4 abid:{q}"
ex = lambda k: f"v_exp_f32 v{G+k}, v{G+k} clamp"
rc = lambda k: f"v_rcp_f32 v{R+k}, v{R+k}"
def pre(P, q):
    g, p = G + 4 * q, P + 4 * q
    return [f"v_pk_mul_f32 {p2(p)}, {p2(g+2)}, {p2(p)}", f"v_pk_mul_f32 {p2(R+2*q)}, {p2(g)}, {p2(g+2)}",
            f"v_pk_fma_f32 {p2(p)}, {p2(g)}, {p2(p+2)}, {p2(p)}", f"v_pk_add_f32 {p2(p+2)}, {p2(g)}, {p2(g+2)}"]
def acc(P, q):
    p = P + 4 * q
    return [f"v_pk_fma_f32 {p2(DEN)}, {p2(R+2*q)}, {p2(p+2)}, {p2(DEN)}", f"v_pk_fma_f32 {p2(NUM)}, {p2(R+2*q)}, {p2(p)}, {p2(NUM)}"]

def slow_m(P, tag, with_rcp):
    I(f"s_add_u32 s{sCL}, s{sCL}, 16")
    for q in range(4):
        I(f"s_cmp_lg_u32 s{sCL}, 0")
        I(f"s_cbranch_scc1 K2_sd{tag}_{q}")
        I("s_waitcnt lgkmcnt(0)")
        I(f"v_readlane_b32 s{sA}, v{ENDV}, s{sNN}")
        I(f"v_mov_b64 {p2(VA4)}, {p2(VAN)}")
        I(f"v_mov_b64 {p2(VA4+2)}, {p2(VAN)}")
        I(f"s_ff1_i32_b64 s{sNN}, {s2(sML)}")
        I(f"s_bitset0_b64 {s2(sML)}, s{sNN}")
        I(f"s_lshl_b32 s{sD}, s{sNN}, 8")
        I(f"v_add_u32 v{VAN}, s{sD}, v{LANET}")
        I(f"s_cmp_ge_u32 s{sA}, s{sEND}")
        I(f"s_cselect_b32 s{sLL}, 1, 0")
        I(f"s_min_u32 s{sA}, s{sA}, s{sEND}")
        I(f"ds_read2_b32 {p2(VAN)}, v{VAN} offset0:0 offset1:0")
        I(f"s_sub_u32 s{sCL}, s{sA}, s{sEL}")
        I(f"s_mov_b32 s{sEL}, s{sA}")
        L(f"K2_sd{tag}_{q}")
        I(ma(P, q))
        I(f"s_sub_u32 s{sCL}, s{sCL}, 4")
    for q in range(4):
        I(mb(P, q))
        I(rc(q) if with_rcp else "s_nop 0")
    for q in range(4):
        I(me(q))
        I(rc(4 + q) if with_rcp else "s_nop 0")
    for k in range(4):
        I(ex(k))

assert NBUF == 2
for x in idx_reads(0): I(x)
I(f"s_cmp_ge_u32 s{sW}, {OPT['npre']}")
I("s_cbranch_scc1 K2_late")
I("s_waitcnt lgkmcnt(0)")
for x in loads(PA): I(x)
for x in idx_reads(1): I(x)
L("K2_late")
I(f"s_mov_b64 exec, {s2(sPM)}")
I(f"ds_write_b64 v{PA2}, {p2(PZ)} offset:{L_E8}")
for k in range(8):
    m = (sM1 if k < 4 else sM2) + 2 * (k % 4)
    I(f"s_mov_b64 exec, {s2(m)}")
    if k >= 4:
        I(f"s_cbranch_execz K2_ne{k}")
    I(f"ds_write_b64 v{RB[k]+3}, {p2(RB[k])} offset:{L_E8}")
    if k >= 4:
        L(f"K2_ne{k}")
I("s_mov_b64 exec, -1")
I(f"s_cmp_lt_u32 s{sW}, 8")
I("s_cbranch_scc1 K2_noau")
I(f"s_cmp_eq_u32 s{sFIRST}, 0")
I("s_cbranch_scc1 K2_noau")
I(f"v_and_b32 v{T1}, 31, v{LANE}")
I(f"v_lshrrev_b32 v{T2}, 5, v{LANE}")
I(f"v_bfe_u32 v{ND}, v{LANE}, 1, 3")
I(f"v_xor_b32 v{ND}, v{ND}, v{T2}")
I(f"v_lshlrev_b32 v{ND}, 4, v{ND}")
I(f"v_lshl_add_u32 v{ND}, v{T1}, 7, v{ND}")
I(f"s_and_b32 s{sA}, s{sW}, 1")
I(f"s_lshl_b32 s{sA}, s{sA}, 12")
I(f"s_add_u32 s{sA}, s{sA}, {L_XN}")
for s_ in range(4):
    I(f"v_xor_b32 v{ND+1}, {32*s_}, v{ND}")
    I(f"v_add_u32 v{ND+1}, s{sA}, v{ND+1}")
    I(f"ds_read_b128 {v4(AXR+4*s_)}, v{ND+1}")
I(f"s_bfe_u32 s{sD}, s{sW}, 0x20001")
I(f"s_lshl_b32 s{sD}, s{sD}, 12")
I(f"s_add_u32 s{sD}, s{sD}, {L_WF}")
I(f"v_lshl_add_u32 v{T0}, v{LANE}, 4, s{sD}")
for s_ in range(4):
    I(f"ds_read_b128 {v4(AFR+4*s_)}, v{T0} offset:{1024*s_}")
I("s_waitcnt lgkmcnt(0)")
for s_ in range(4):
    c_in = "0" if s_ == 0 else f"v[{ADD}:{ADD+15}]"
    I(f"v_mfma_f32_32x32x16_bf16 v[{ADD}:{ADD+15}], {v4(AXR+4*s_)}, {v4(AFR+4*s_)}, {c_in}")
I(f"s_and_b32 s{sA}, s{sW}, 1")
I(f"s_lshl_b32 s{sA}, s{sA}, 13")
I(f"s_and_b32 s{sB}, s{sW}, 2")
I(f"s_lshl_b32 s{sB}, s{sB}, 6")
I(f"s_add_u32 s{sA}, s{sA}, s{sB}")
I(f"s_and_b32 s{sB}, s{sW}, 4")
I(f"s_lshl_b32 s{sB}, s{sB}, 12")
I(f"s_add_u32 s{sA}, s{sA}, s{sB}")
I(f"s_add_u32 s{sA}, s{sA}, {L_T}")
I(f"v_lshrrev_b32 v{T1}, 5, v{LANE}")
I(f"v_and_b32 v{T2}, 31, v{LANE}")
I(f"v_lshlrev_b32 v{T1}, 10, v{T1}")
I(f"v_lshl_add_u32 v{T1}, v{T2}, 2, v{T1}")
I(f"v_add_u32 v{T1}, s{sA}, v{T1}")
I(f"s_cmp_eq_u32 s{sB}, 0")
I(f"s_cselect_b32 s{sA}, {NLOG2E:#x}, 1.0")
I(f"s_cselect_b32 s{sB}, {f2u(-float(CLAMP_LOG)):#x}, 0")
I(f"v_mov_b32 v{T2}, s{sB}")
I("s_nop 3")
for r in range(16):
    I(f"v_fma_f32 v{ADD+r}, v{ADD+r}, s{sA}, v{T2}")
    I(f"ds_write_b32 v{T1}, v{ADD+r} offset:{(8*(r>>2) + (r&3))*256}")
L("K2_noau")
I("s_waitcnt lgkmcnt(0)")
I("s_barrier")
stamp(4)
I(f"s_cmp_eq_u32 s{sT}, 0")
I("s_cbranch_scc1 K2_done")
I(f"ds_read_b64 {p2(AE)}, v{PE} offset:{L_E8}")
I(f"ds_read2_b32 {p2(VAN)}, v{VAN} offset0:0 offset1:0")
I(f"ds_read_b32 v{VA4}, v{VAA} offset:{T_ATAB}")
I(f"s_cmp_lt_u32 s{sW}, {OPT['npre']}")
I("s_cbranch_scc1 K2_early")
for x in loads(PA): I(x)
for x in idx_reads(1): I(x)
L("K2_early")
I("s_waitcnt lgkmcnt(0)")
for x in loads(PB): I(x)
for x in idx_reads(2): I(x)
for k in range(1, 4):
    I(f"v_mov_b32 v{VA4+k}, v{VA4}")
if OPT["prio"]:
    I("s_setprio 3")
I(f"s_sub_u32 s{sCL}, s{sCL}, 16")
I(f"s_max_u32 s{sLD}, s{sT}, {NBUF}")
I(f"s_sub_u32 s{sLD}, s{sLD}, {NBUF}")
I(f"s_waitcnt vmcnt({16 * (NBUF - 1)}) lgkmcnt(4)")
slow_m(PA, "p", False)
I(f"ds_read_b64 {p2(AE)}, v{PE} offset:{L_E8 + 128}")
for k in range(4, 8):
    I(ex(k))
stamp(9)
stamp(14, True)

def body(t):
    Pc, Pn = BUFS[t], BUFS[(t + 1) % NBUF]
    L(f"K2_top{t}")
    for k in range(8, 16):
        I(ex(k))
    for k in range(8):
        I(f"v_pk_fma_f32 {p2(G+2*k)}, {p2(G+2*k)}, {s2(sBIG)}, 1.0 op_sel_hi:[1,1,0]")
    for q in range(4):
        for x in pre(Pc, q): I(x)
    I(f"s_sub_u32 s{sCL}, s{sCL}, 16")
    I(f"s_waitcnt vmcnt({16 * (NBUF - 2)}) lgkmcnt(4)")
    I(f"s_cbranch_scc1 K2_sdot{t}")
    for x in (ma(Pn, 0), rc(0), ma(Pn, 1), rc(1), mb(Pn, 0), rc(2), mb(Pn, 1), rc(3), me(0), rc(4), me(1), rc(5),
              ma(Pn, 2), rc(6), ma(Pn, 3), rc(7), mb(Pn, 2), ex(0), mb(Pn, 3), ex(1), me(2), ex(2), me(3), ex(3)):
        I(x)
    L(f"K2_mf{t}")
    I(f"ds_read_b64 {p2(AE)}, v{PE} offset:{L_E8 + 128 * (t + 2)}")
    for k in range(4, 8):
        I(ex(k))
    L(f"K2_acc{t}")
    I(f"s_sub_u32 s{sCF}, s{sCF}, 16")
    I(f"s_cbranch_scc1 K2_sacc{t}")
    for q in range(4):
        for x in acc(Pc, q): I(x)
    L(f"K2_ld{t}")
    I(f"s_sub_u32 s{sLD}, s{sLD}, 1")
    I(f"s_cbranch_scc1 K2_nold{t}")
    I("s_waitcnt lgkmcnt(1)")
    if not OPT["exp_noload"]:
        for x in loads(Pc): I(x)
    if not OPT["exp_noidx"]:
        for x in idx_reads(NBUF + 1 + t): I(x)
    else:
        I("s_waitcnt lgkmcnt(0)")
    L(f"K2_nx{t}")
    if t == NBUF - 1:
        I(f"v_add_u32 v{PI}, {64 * NBUF}, v{PI}")
        I(f"v_add_u32 v{PE}, {128 * NBUF}, v{PE}")

A(".p2align 3")
for t in range(NBUF):
    body(t)
I("s_branch K2_top0")

for t in range(NBUF):
    Pc, Pn = BUFS[t], BUFS[(t + 1) % NBUF]
    L(f"K2_nold{t}")
    I(f"s_mov_b32 s{sLD}, 0")
    I("s_waitcnt vmcnt(0) lgkmcnt(0)")
    I(f"s_branch K2_nx{t}")
    L(f"K2_sdot{t}")
    I(f"s_cmp_eq_u32 s{sLL}, 0")
    I(f"s_cbranch_scc1 K2_sdq{t}")
    for k in range(8):
        I(rc(k))
    I(f"s_branch K2_acc{t}")
    L(f"K2_sdq{t}")
    slow_m(Pn, str(t), True)
    I(f"s_branch K2_mf{t}")
    L(f"K2_sacc{t}")
    I(f"s_add_u32 s{sCF}, s{sCF}, 16")
    for q in range(4):
        for x in acc(Pc, q): I(x)
        I(f"s_sub_u32 s{sCF}, s{sCF}, 4")
        I(f"s_cbranch_scc0 K2_sa{t}_{q}")
        I(f"v_add_f32 v{T1}, v{NUM}, v{NUM+1}")
        I(f"v_add_f32 v{T2}, v{DEN}, v{DEN+1}")
        I(f"v_add_u32 v{T0}, s{sFA}, v{LANET}")
        I(f"v_mov_b64 {p2(NUM)}, 0")
        I(f"v_mov_b64 {p2(DEN)}, 0")
        I(f"ds_write_b32 v{T0}, v{T1} offset:{T_NUM}")
        I(f"ds_write_b32 v{T0}, v{T2} offset:{T_DEN}")
        I(f"s_cmp_lg_u32 s{sLF}, 0")
        I("s_cbranch_scc1 K2_done")
        I(f"s_ff1_i32_b64 s{sC}, {s2(sMF)}")
        I(f"s_bitset0_b64 {s2(sMF)}, s{sC}")
        I(f"v_readlane_b32 s{sA}, v{ENDV}, s{sC}")
        I(f"s_lshl_b32 s{sFA}, s{sC}, 8")
        if OPT["prio"]:
            I(f"s_sub_u32 s{sD}, s{sEND}, s{sEF}")
            for lvl, thr in zip((2, 1, 0), OPT["prio"]):
                I(f"s_cmp_gt_u32 s{sD}, {thr}")
                I(f"s_cbranch_scc1 K2_sp{t}_{q}")
                I(f"s_setprio {lvl}")
            L(f"K2_sp{t}_{q}")
        I(f"s_cmp_ge_u32 s{sA}, s{sEND}")
        I(f"s_cselect_b32 s{sLF}, 1, 0")
        I(f"s_min_u32 s{sA}, s{sA}, s{sEND}")
        I(f"s_sub_u32 s{sCF}, s{sA}, s{sEF}")
        I(f"s_sub_u32 s{sCF}, s{sCF}, 1")
        I(f"s_mov_b32 s{sEF}, s{sA}")
        L(f"K2_sa{t}_{q}")
    I(f"s_branch K2_ld{t}")

L("K2_done")
if OPT["prio"]:
    I("s_setprio 0")
stamp(10)
stamp(15, True)
EN, ED, EH, EU = 0, 4, 8, 16
I("s_waitcnt vmcnt(0)")
I(f"v_lshrrev_b32 v24, 4, v{TID}")
I("v_lshlrev_b32 v25, 2, v24")
I(f"ds_read2st64_b32 v[26:27], v25 offset0:{(L_MISC + M_LMIN)//256} offset1:{(L_MISC + M_LCNT)//256}")
I(f"v_and_b32 v28, 15, v{TID}")
I("v_lshlrev_b32 v28, 4, v28")
I(f"v_add_u32 v28, {L_T}, v28")
I("v_lshl_add_u32 v29, v24, 8, v28")
I(f"ds_read_b128 {v4(EU)}, v29 offset:{T_UT}")
I(f"v_bfe_u32 v31, v{TID}, 5, 3")
I(f"v_bfe_u32 v20, v{TID}, 1, 3")
I("v_xor_b32 v31, v31, v20")
I("v_lshlrev_b32 v31, 1, v31")
I(f"v_and_b32 v20, 1, v{TID}")
I("v_add_lshl_u32 v31, v31, v20, 3")
I("v_lshl_add_u32 v31, v24, 7, v31")
I(f"v_add_u32 v31, {L_XN}, v31")
I("ds_read_b64 v[20:21], v31")
I(f"v_cmp_gt_u32 vcc, {BN}, v24")
I("s_waitcnt lgkmcnt(0)")
I("v_cndmask_b32 v27, 0, v27, vcc")
I("v_add_u32 v26, 50, v26")
I("s_barrier")
stamp(11)
I(f"ds_read_b128 {v4(EN)}, v29 offset:{T_NUM}")
I(f"ds_read_b128 {v4(ED)}, v29 offset:{T_DEN}")
L("K2_heads")
I("v_cmp_lt_u32 vcc, 0, v27")
I(f"v_mov_b32 v30, {BN}")
I("s_nop 0")
I("v_cndmask_b32 v30, v30, v26, vcc")
I("v_lshl_add_u32 v30, v30, 8, v28")
I(f"ds_read_b128 {v4(EH)}, v30 offset:{T_NUM}")
I(f"ds_read_b128 {v4(EH+4)}, v30 offset:{T_DEN}")
I("v_add_u32 v26, 1, v26")
I("v_max_u32 v27, 1, v27")
I("v_add_u32 v27, -1, v27")
I("v_cmp_lt_u32 vcc, 0, v27")
I("s_waitcnt lgkmcnt(0)")
for k in range(4):
    I(f"v_pk_add_f32 {p2(EN+2*k)}, {p2(EN+2*k)}, {p2(EH+2*k)}")
I("s_cbranch_vccnz K2_heads")
I(f"s_cmp_eq_u32 s{sFIRST}, 1")
I("s_cbranch_scc1 K2_nocarry")
for k in range(8):
    I(f"v_accvgpr_read_b32 v{EH+k}, a{aTOT+k}")
for k in range(4):
    I(f"v_pk_add_f32 {p2(EN+2*k)}, {p2(EN+2*k)}, {p2(EH+2*k)}")
L("K2_nocarry")
I(f"s_cmp_lg_u32 s{sMORE}, 0")
I("s_cbranch_scc1 K2_next")
I(f"s_mov_b32 s{sA}, 0x358637bd")
for k in range(4):
    I(f"v_add_f32 v{ED+k}, s{sA}, v{ED+k}")
for k in range(4):
    I(f"v_rcp_f32 v{ED+k}, v{ED+k}")
for k in range(2):
    I(f"v_lshlrev_b32 v{EH+4+2*k}, 16, v{20+k}")
    I(f"v_and_b32 v{EH+5+2*k}, 0xffff0000, v{20+k}")
for k in range(4):
    I(f"v_fma_f32 v{EN+k}, v{EN+k}, v{ED+k}, v{EU+k}")
for k in range(4):
    I(f"v_cmp_lt_f32 vcc, 0, v{EN+k}")
    I(f"v_mul_f32 v{ED+k}, 0, v{EN+k}")
    I("s_nop 0")
    I(f"v_cndmask_b32 v{EN+k}, v{ED+k}, v{EN+k}, vcc")
for k in range(4):
    I(f"v_add_f32 v{EN+k}, v{EN+k}, v{EH+4+k}")
for k in range(2):
    I(f"v_cvt_pk_bf16_f32 v{ED+k}, v{EN+2*k}, v{EN+2*k+1}")
I(f"s_mul_i32 s{sA}, s2, {BN*128}")
I(f"v_lshl_add_u32 v24, v{TID}, 3, s{sA}")
I(f"buffer_store_dwordx2 {p2(ED)}, v24, {s4(sOUT)}, 0 offen")
stamp(12)
if OPT["stamp"]:
    I("s_waitcnt vmcnt(0)")
stamp(13)
stamp_flush(1)
spin_end(OPT["spin2"], 2)
L("K2_end")
I("s_endpgm")

L("K2_shrink")
I(f"v_mov_b32 v{C2}, 0")
I(f"s_mov_b32 s{sR}, 16")
for i in range(4):
    I(f"s_mov_b64 {s2(sM2+2*i)}, 0")
I("s_branch K2_scan")

L("K2_next")
for k in range(8):
    I(f"v_accvgpr_write_b32 a{aTOT+k}, v{EN+k}")
I(f"s_mov_b32 s{sFIRST}, 0")
I(f"s_add_u32 s{sCONS}, s{sCONS}, s{sR}")
I("s_barrier")
lds_init()
I("s_waitcnt vmcnt(0) lgkmcnt(0)")
I("s_barrier")
I("s_branch K2_recs")

A('.section .rodata,"a"')
def kd(name, nv, ns, acc_):
    A(".p2align 6")
    A(f".amdhsa_kernel {name}")
    A(f"  .amdhsa_next_free_vgpr {nv}")
    A(f"  .amdhsa_next_free_sgpr {ns}")
    A(f"  .amdhsa_accum_offset {acc_}")
    A("  .amdhsa_group_segment_fixed_size 0")
    A("  .amdhsa_kernarg_size 96")
    A("  .amdhsa_user_sgpr_count 2")
    A("  .amdhsa_user_sgpr_kernarg_segment_ptr 1")
    A("  .amdhsa_system_sgpr_workgroup_id_x 1")
    A("  .amdhsa_dx10_clamp 0")
    A(".end_amdhsa_kernel")
kd(f"{NAME}_kernel", NV + NA, 102 if OPT["stamp"] or OPT["spin2"] else NS_, NV)

txt = "\n".join(x for x in out if x.strip() != "") + "\n"
dst = OPT.get("o", "g6.s")
open(dst, "w").write(txt)
print("wrote", dst, len(txt), "bytes")
```

```python
import mb
from gen_d2 import init as init0, p2, idx
from gen_d7 import pre, acc, ma, mb_, me, ex, rc, G, IX, AE, VA4
br = "s_sub_u32 s30, s30, 0\n s_cbranch_scc1 @x\n"
def ldv(P, j): return f"buffer_load_dword v{P+j}, v{IX+j}, s[40:43], 0 offen\n"
def lds_(P, j, base): return f"buffer_load_dword v{P+j}, v110, s[44:47], s{base+j} offen\n"
def tile(Pc, Pn, t, mode):
    s = "".join(ex(k) for k in range(8, 16))
    s += "".join(f"v_pk_fma_f32 {p2(G+2*k)}, {p2(G+2*k)}, s[20:21], 1.0 op_sel_hi:[1,1,0]\n" for k in range(8))
    for q in range(4): s += "".join(pre(Pc, q))
    s += ("s_waitcnt vmcnt(0)\n" if mode != "none" else "") + br
    b = 4*t
    s += ma(Pn,0)+rc(0)+ma(Pn,1)+rc(1)+mb_(Pn,0)+rc(2)+mb_(Pn,1)+rc(3)+me(0,b)+rc(4)+me(1,b)+rc(5)+ma(Pn,2)+rc(6)+ma(Pn,3)+rc(7)
    s += mb_(Pn,2)+ex(0)+mb_(Pn,3)+ex(1)+me(2,b)+ex(2)+me(3,b)+ex(3)
    if t == 0: s += f"ds_read_b64 {p2(AE)}, v115\n"
    s += "".join(ex(k) for k in range(4, 8)) + br
    s += "".join(acc(Pc, q) for q in range(4))
    if mode == "v": s += "s_waitcnt lgkmcnt(0)\n" + "".join(ldv(Pc, j) for j in range(16)) + idx()
    if mode == "vnoidx": s += "s_waitcnt lgkmcnt(0)\n" + "".join(ldv(Pc, j) for j in range(16))
    if mode == "s":
        s += "s_waitcnt lgkmcnt(0)\n" + "".join(lds_(Pc, j, 64) for j in range(16))
        s += "s_add_u32 s50, s50, 64\n s_and_b32 s50, s50, 0xfff\n s_load_dwordx16 s[64:79], s[48:49], s50\n"
    if mode == "snoidx":
        s += "s_waitcnt lgkmcnt(0)\n" + "".join(lds_(Pc, j, 64) for j in range(16))
    return s
i0 = init0() + "s_mov_b32 s24, 0x3f80\n s_mov_b32 s30, 5\n v_and_b32 v66, 3, v119\n v_cmp_eq_u32 vcc, 0, v66\n v_mov_b32 v67, 0x3f80\n v_cndmask_b32 v66, 0, v67, vcc\n v_mov_b32 v67, 0\n v_mov_b32 v68, 0\n v_mov_b32 v69, v66\n" + "".join(f"v_mov_b32 v{VA4+k}, -4.0\n" for k in range(4))
i0 += """s_load_dwordx2 s[48:49], s[0:1], 24
 s_waitcnt lgkmcnt(0)
 s_mov_b32 s44, s48
 s_and_b32 s45, s49, 0xffff
 s_mov_b32 s46, 0x400000
 s_mov_b32 s47, 0x20000
 s_lshl_b32 s51, s2, 14
 s_add_u32 s51, s51, 0x400000
 s_add_u32 s48, s48, s51
 s_addc_u32 s49, s49, 0
 s_mov_b32 s52, s48
 s_and_b32 s53, s49, 0xffff
 s_mov_b32 s54, 16384
 s_mov_b32 s55, 0x20000
 s_lshl_b32 s56, s13, 10
 v_lshl_add_u32 v100, v119, 4, s56
 ds_read_b128 v[104:107], v100
 s_waitcnt lgkmcnt(0)
 buffer_store_dwordx4 v[104:107], v100, s[52:55], 0 offen
 s_waitcnt vmcnt(0)
 s_barrier
 s_and_b32 s51, s13, 3
 s_lshl_b32 s51, s51, 12
 s_add_u32 s48, s48, s51
 s_addc_u32 s49, s49, 0
 s_lshr_b32 s50, s13, 2
 s_lshl_b32 s50, s50, 10
 s_load_dwordx16 s[64:79], s[48:49], s50
 s_waitcnt lgkmcnt(0)
"""
def body(m): return tile(0, 16, 0, m) + tile(16, 0, 1, m) + "@x:\n"
K = {m: (i0, body(m)) for m in ("none", "v", "s", "vnoidx", "snoidx")}
mb.emit(K, "d8.s", nv=120, na=8)
```

```python
import mb
from gen_d2 import init as init0, p2, idx
from gen_d7 import pre, acc, ma, mb_, me, ex, rc, G, IX, AE, VA4
br = "s_sub_u32 s30, s30, 0\n s_cbranch_scc1 @x\n"
def ldv(P, j): return f"buffer_load_dword v{P+j}, v{IX+j}, s[40:43], 0 offen\n"
def lds_(P, j, base): return f"buffer_load_dword v{P+j}, v110, s[44:47], s{base+j} offen\n"
def tile(Pc, Pn, t, mode):
    s = "".join(ex(k) for k in range(8, 16))
    s += "".join(f"v_pk_fma_f32 {p2(G+2*k)}, {p2(G+2*k)}, s[20:21], 1.0 op_sel_hi:[1,1,0]\n" for k in range(8))
    for q in range(4): s += "".join(pre(Pc, q))
    s += ("s_waitcnt vmcnt(0)\n" if mode != "none" else "") + br
    b = 4*t
    s += ma(Pn,0)+rc(0)+ma(Pn,1)+rc(1)+mb_(Pn,0)+rc(2)+mb_(Pn,1)+rc(3)+me(0,b)+rc(4)+me(1,b)+rc(5)+ma(Pn,2)+rc(6)+ma(Pn,3)+rc(7)
    s += mb_(Pn,2)+ex(0)+mb_(Pn,3)+ex(1)+me(2,b)+ex(2)+me(3,b)+ex(3)
    if t == 0: s += f"ds_read_b64 {p2(AE)}, v115\n"
    s += "".join(ex(k) for k in range(4, 8)) + br
    s += "".join(acc(Pc, q) for q in range(4))
    if mode == "v": s += "s_waitcnt lgkmcnt(0)\n" + "".join(ldv(Pc, j) for j in range(16)) + idx()
    if mode == "vnoidx": s += "s_waitcnt lgkmcnt(0)\n" + "".join(ldv(Pc, j) for j in range(16))
    if mode == "s":
        s += "s_waitcnt lgkmcnt(0)\n" + "".join(lds_(Pc, j, 64) for j in range(16))
        s += "s_add_u32 s50, s50, 64\n s_and_b32 s50, s50, 0xfff\n s_load_dwordx16 s[64:79], s[48:49], s50\n"
    if mode == "snoidx":
        s += "s_waitcnt lgkmcnt(0)\n" + "".join(lds_(Pc, j, 64) for j in range(16))
    if mode in ("g", "gnoidx"):
        s += "s_waitcnt lgkmcnt(0)\n"
        for h in range(2):
            s += "".join(f"s_add_u32 s{80+2*j}, s{64+8*h+j}, s44\n" for j in range(8))
            s += "".join(f"global_load_dword v{Pc+8*h+j}, v110, s[{80+2*j}:{81+2*j}]\n" for j in range(8))
        if mode == "g":
            s += "s_add_u32 s50, s50, 64\n s_and_b32 s50, s50, 0xfff\n s_load_dwordx16 s[64:79], s[48:49], s50\n"
    return s
i0 = init0() + "s_mov_b32 s24, 0x3f80\n s_mov_b32 s30, 5\n v_and_b32 v66, 3, v119\n v_cmp_eq_u32 vcc, 0, v66\n v_mov_b32 v67, 0x3f80\n v_cndmask_b32 v66, 0, v67, vcc\n v_mov_b32 v67, 0\n v_mov_b32 v68, 0\n v_mov_b32 v69, v66\n" + "".join(f"v_mov_b32 v{VA4+k}, -4.0\n" for k in range(4))
i0 += """s_load_dwordx2 s[48:49], s[0:1], 24
 s_waitcnt lgkmcnt(0)
 s_mov_b32 s44, s48
 s_and_b32 s45, s49, 0xffff
 s_mov_b32 s46, 0x400000
 s_mov_b32 s47, 0x20000
 s_mov_b32 s81, s49
 s_mov_b32 s83, s49
 s_mov_b32 s85, s49
 s_mov_b32 s87, s49
 s_mov_b32 s89, s49
 s_mov_b32 s91, s49
 s_mov_b32 s93, s49
 s_mov_b32 s95, s49
 s_lshl_b32 s51, s2, 14
 s_add_u32 s51, s51, 0x400000
 s_add_u32 s48, s48, s51
 s_addc_u32 s49, s49, 0
 s_mov_b32 s52, s48
 s_and_b32 s53, s49, 0xffff
 s_mov_b32 s54, 16384
 s_mov_b32 s55, 0x20000
 s_lshl_b32 s56, s13, 10
 v_lshl_add_u32 v100, v119, 4, s56
 ds_read_b128 v[104:107], v100
 s_waitcnt lgkmcnt(0)
 buffer_store_dwordx4 v[104:107], v100, s[52:55], 0 offen
 s_waitcnt vmcnt(0)
 s_barrier
 s_and_b32 s51, s13, 3
 s_lshl_b32 s51, s51, 12
 s_add_u32 s48, s48, s51
 s_addc_u32 s49, s49, 0
 s_lshr_b32 s50, s13, 2
 s_lshl_b32 s50, s50, 10
 s_load_dwordx16 s[64:79], s[48:49], s50
 s_waitcnt lgkmcnt(0)
"""
def body(m): return tile(0, 16, 0, m) + tile(16, 0, 1, m) + "@x:\n"
K = {m: (i0, body(m)) for m in ("none", "v", "g", "vnoidx", "gnoidx")}
mb.emit(K, "d8.s", nv=120, na=8)
```

```python
import mb
from gen_d2 import init as init0
base = init0() + "s_and_b32 s45, s41, 0xffff\n s_mov_b32 s44, s40\n s_mov_b32 s46, 0x400000\n s_mov_b32 s47, 0x20000\n"
adv = "v_add_u32 v114, 64, v114\n v_and_b32 v114, 0x3fff, v114\n"
def x1():
    s = "".join(f"ds_read_b128 v[{40+4*j}:{43+4*j}], v114 offset:{16*j}\n" for j in range(4)) + adv + "s_waitcnt lgkmcnt(0)\n s_waitcnt vmcnt(16)\n"
    return s + "".join(f"buffer_load_dword v{j}, v{40+j}, s[40:43], 0 offen\n" for j in range(16))
i2 = base + "v_lshrrev_b32 v100, 5, v119\n v_lshlrev_b32 v100, 5, v100\n v_add_u32 v114, v114, v100\n v_and_b32 v101, 31, v119\n v_lshlrev_b32 v101, 3, v101\n"
def x2():
    s = "".join(f"ds_read_b128 v[{40+4*j}:{43+4*j}], v114 offset:{16*j}\n" for j in range(2)) + adv + "s_waitcnt lgkmcnt(0)\n s_waitcnt vmcnt(8)\n"
    return s + "".join(f"v_add_u32 v{40+j}, v{40+j}, v101\n buffer_load_dwordx2 v[{2*j}:{2*j+1}], v{40+j}, s[44:47], 0 offen\n" for j in range(8))
i4 = base + "v_lshrrev_b32 v100, 4, v119\n v_lshlrev_b32 v100, 4, v100\n v_add_u32 v114, v114, v100\n v_and_b32 v101, 15, v119\n v_lshlrev_b32 v101, 4, v101\n"
def x4():
    s = "ds_read_b128 v[40:43], v114\n" + adv + "s_waitcnt lgkmcnt(0)\n s_waitcnt vmcnt(4)\n"
    return s + "".join(f"v_add_u32 v{40+j}, v{40+j}, v101\n buffer_load_dwordx4 v[{4*j}:{4*j+3}], v{40+j}, s[44:47], 0 offen\n" for j in range(4))
def x4dma():
    s = "ds_read_b128 v[40:43], v114\n" + adv + "s_waitcnt lgkmcnt(0)\n s_waitcnt vmcnt(4)\n s_lshl_b32 s50, s13, 10\n s_add_u32 m0, s50, 0x8000\n"
    return s + "".join(f"v_add_u32 v{40+j}, v{40+j}, v101\n buffer_load_dwordx4 v{40+j}, s[44:47], 0 offen lds\n" for j in range(4))
K = {"x1": (base, x1()), "x2": (i2, x2()), "x4": (i4, x4()), "x4 dma": (i4, x4dma()), "x1 again": (base, x1())}
mb.emit(K, "d9.s", nv=120, na=8)
```
